```python
import torch

def _softmax(x, axis=-1):
    return torch.softmax(x, dim=axis)
def _gelu(x):
    return torch.nn.functional.gelu(x, approximate="tanh")
def _silu(x):
    return torch.nn.functional.silu(x)
def _sigmoid(x):
    return torch.sigmoid(x)
def _layernorm(x, axis=-1, eps=1e-5):
    m = x.mean(dim=axis, keepdim=True)
    v = x.var(dim=axis, keepdim=True, unbiased=False)
    return (x - m) / torch.sqrt(v + eps)
def _scatter_add(tgt, idx, src, axis=0):
    return tgt.clone().index_add_(axis, idx, src)
def _segment_sum(src, seg, n):
    out = torch.zeros((n,) + src.shape[1:], dtype=src.dtype)
    return out.index_add_(0, seg, src)
def _pad(x, pw):
    flat = tuple(v for pair in reversed(pw) for v in pair)
    return torch.nn.functional.pad(x, flat)

kernel_name = 'gated_mix__softmax_full_mha__swiglu_ffn__prompt'

def setup_inputs():

    _w = (lambda a: (lambda t: t.to(torch.bfloat16) if t.is_floating_point() else t)(torch.as_tensor(a)))
    def _A_setup():
        B, S, D = 1, 2048, 512
        return {
            "x": _w((lambda *s: torch.randn(*s, dtype=torch.bfloat16) * 0.05)(B, S, D)),
            "wqkv": _w((lambda *s: torch.randn(*s, dtype=torch.bfloat16) * 0.8)(D, 3 * D)),
            "wo": _w((lambda *s: torch.randn(*s, dtype=torch.bfloat16) * 0.05)(D, D)),
        }
    _A_in = _A_setup()

    def _B_setup():
        B, S, D, F = 1, 2048, 512, 1376
        return {
            "x": _w((lambda *s: torch.randn(*s, dtype=torch.bfloat16) * 0.05)(B, S, D)),
            "w_gate": _w((lambda *s: torch.randn(*s, dtype=torch.bfloat16) * 0.1)(D, F)),
            "w_up": _w((lambda *s: torch.randn(*s, dtype=torch.bfloat16) * 0.1)(D, F)),
            "w_down": _w((lambda *s: torch.randn(*s, dtype=torch.bfloat16) * 0.1)(F, D)),
        }
    _B_in = _B_setup()

    return {
        "A_x": _A_in["x"],
        "A_wqkv": _A_in["wqkv"],
        "A_wo": _A_in["wo"],
        "B_x": _B_in["x"],
        "B_w_gate": _B_in["w_gate"],
        "B_w_up": _B_in["w_up"],
        "B_w_down": _B_in["w_down"],
        "gate_w": _w((lambda *s: torch.randn(*s, dtype=torch.bfloat16) * 0.05)(512) * 16.0),
    }

def reference(A_x, A_wqkv, A_wo, B_x, B_w_gate, B_w_up, B_w_down, gate_w):
    def _A_ref(x, wqkv, wo):
        B, S, D = x.shape
        H = 32; Dh = D // H
        qkv = (lambda x, *d: x.permute(*d))((x @ wqkv).reshape(B, S, 3, H, Dh), 2, 0, 3, 1, 4)
        q, k, v = qkv[0], qkv[1], qkv[2]
        scale = Dh ** -0.5
        scores = torch.einsum("bhqd,bhkd->bhqk", q, k) * scale
        p = _softmax(scores, axis=-1)
        o = torch.einsum("bhqk,bhkd->bhqd", p, v)
        return (lambda x, *d: x.permute(*d))(o, 0, 2, 1, 3).reshape(B, S, D) @ wo

    def _B_ref(x, w_gate, w_up, w_down):
        g = _silu(x @ w_gate)
        u = x @ w_up
        return (g * u) @ w_down

    x = A_x
    g = _sigmoid((x * gate_w).sum(-1, keepdims=True))
    a = _A_ref(x, A_wqkv, A_wo)
    b = _B_ref(x, B_w_gate, B_w_up, B_w_down)
    return g * a + (1 - g) * b
```

```python
NAME="gated_mix__softmax_full_mha__swiglu_ffn__prompt"
QF=0x000000; KF=0x200000; VF=0x400000
AF=0x600000
WGU=0xE00000
WF3=0x1100000
GOFF=0x1300000
KN=0x1304000
BP=0x1400000
WS_SIZE=0x1800000
NKS=118

class Asm:
    def __init__(self):
        self.l=[]
    def __call__(self,s):
        for x in s.strip("\n").split("\n"):
            x=x.strip()
            if x: self.l.append("  "+x)
    def label(self,s): self.l.append(s+":")
    def raw(self,s): self.l.append(s)
    def text(self): return "\n".join(self.l)+"\n"

def vr(a,n=4): return f"v[{a}:{a+n-1}]"
def sr(a,n=4): return f"s[{a}:{a+n-1}]"

def srd(A, d, lo, nbytes):
    A(f"s_mov_b32 s{d}, s{lo}")
    A(f"s_and_b32 s{d+1}, s{lo+1}, 0xffff")
    A(f"s_mov_b32 s{d+2}, {nbytes}")
    A(f"s_mov_b32 s{d+3}, 0x00020000")

def kernel_header(name):
    return f".globl {name}\n.p2align 8\n.type {name},@function\n{name}:\n"

def kernel_desc(name, vgpr, sgpr=102, accum=None):
    if accum is None: accum=(vgpr+3)//4*4
    return f""".p2align 6
.amdhsa_kernel {name}
  .amdhsa_next_free_vgpr {vgpr}
  .amdhsa_next_free_sgpr {sgpr}
  .amdhsa_accum_offset {accum}
  .amdhsa_group_segment_fixed_size 0
  .amdhsa_kernarg_size 88
  .amdhsa_user_sgpr_count 2
  .amdhsa_user_sgpr_kernarg_segment_ptr 1
  .amdhsa_system_sgpr_workgroup_id_x 1
.end_amdhsa_kernel
"""

def dpp_reduce16(A, op, v, nops="s_nop 1"):
    for c in ("quad_perm:[1,0,3,2]","quad_perm:[2,3,0,1]","row_half_mirror","row_mirror"):
        A(nops)
        A(f"{op}_dpp v{v}, v{v}, v{v} {c} row_mask:0xf bank_mask:0xf")

STAMP=0x1700000
import os
INSTR=os.environ.get("INSTR","0")=="1"
def stamp_begin(A):
    if not INSTR: return
    A("s_memrealtime s[88:89]")
    A("s_memtime s[90:91]")
def stamp_mid(A, idx):
    if not INSTR: return
    A(f"s_memtime s[{92+2*idx}:{93+2*idx}]")
def stamp_end(A, kid, wave_sgpr, nw, srd_base=36, nmid=0):
    if not INSTR: return
    A("s_waitcnt vmcnt(0) lgkmcnt(0)")
    A("s_memrealtime s[84:85]")
    A("s_memtime s[86:87]")
    A("s_waitcnt lgkmcnt(0)")
    A(f"s_mul_i32 s83, s2, {nw}")
    A(f"s_add_u32 s83, s83, s{wave_sgpr}")
    A("s_lshl_b32 s83, s83, 6")
    A(f"s_add_u32 s83, s83, {STAMP+kid*0x40000}")
    vals=[88,90,84,86]+[92+2*i for i in range(nmid)]
    for i,sg in enumerate(vals):
        A(f"v_mov_b32 v2, s{sg}")
        A("v_mov_b32 v3, 0")
        A(f"buffer_store_dword v2, v3, s[{srd_base}:{srd_base+3}], s83 offen offset:{4*i}")
```

```python
NAME="gated_mix__softmax_full_mha__swiglu_ffn__prompt"
QF=0x000000; KF=0x200000; VF=0x400000
AF=0x600000
WGU=0xE00000
WF3=0x1100000
GOFF=0x1300000
KN=0x1304000
BP=0x1400000
WS_SIZE=0x1800000
NKS=118

class Asm:
    def __init__(self):
        self.l=[]
    def __call__(self,s):
        for x in s.strip("\n").split("\n"):
            x=x.strip()
            if x: self.l.append("  "+x)
    def label(self,s): self.l.append(s+":")
    def raw(self,s): self.l.append(s)
    def text(self): return "\n".join(self.l)+"\n"

def vr(a,n=4): return f"v[{a}:{a+n-1}]"
def sr(a,n=4): return f"s[{a}:{a+n-1}]"

def srd(A, d, lo, nbytes):
    A(f"s_mov_b32 s{d}, s{lo}")
    A(f"s_and_b32 s{d+1}, s{lo+1}, 0xffff")
    A(f"s_mov_b32 s{d+2}, {nbytes}")
    A(f"s_mov_b32 s{d+3}, 0x00020000")

def kernel_header(name):
    return f".globl {name}\n.p2align 8\n.type {name},@function\n{name}:\n"

def kernel_desc(name, vgpr, sgpr=102, accum=None):
    if accum is None: accum=(vgpr+3)//4*4
    return f""".p2align 6
.amdhsa_kernel {name}
  .amdhsa_next_free_vgpr {vgpr}
  .amdhsa_next_free_sgpr {sgpr}
  .amdhsa_accum_offset {accum}
  .amdhsa_group_segment_fixed_size 0
  .amdhsa_kernarg_size 88
  .amdhsa_user_sgpr_count 2
  .amdhsa_user_sgpr_kernarg_segment_ptr 1
  .amdhsa_system_sgpr_workgroup_id_x 1
.end_amdhsa_kernel
"""

def dpp_reduce16(A, op, v, nops="s_nop 1"):
    for c in ("quad_perm:[1,0,3,2]","quad_perm:[2,3,0,1]","row_half_mirror","row_mirror"):
        A(nops)
        A(f"{op}_dpp v{v}, v{v}, v{v} {c} row_mask:0xf bank_mask:0xf")

STAMP=0x1700000
import os
INSTR=os.environ.get("INSTR","0")=="1"
def stamp_begin(A):
    if not INSTR: return
    A("s_memrealtime s[88:89]")
    A("s_memtime s[90:91]")
def stamp_mid(A, idx):
    if not INSTR: return
    A(f"s_memtime s[{92+2*idx}:{93+2*idx}]")
def stamp_end(A, kid, wave_sgpr, nw, srd_base=36, nmid=0):
    if not INSTR: return
    A("s_waitcnt vmcnt(0) lgkmcnt(0)")
    A("s_memrealtime s[84:85]")
    A("s_memtime s[86:87]")
    A("s_waitcnt lgkmcnt(0)")
    A(f"s_mul_i32 s83, s2, {nw}")
    A(f"s_add_u32 s83, s83, s{wave_sgpr}")
    A("s_lshl_b32 s83, s83, 6")
    A(f"s_add_u32 s83, s83, {STAMP+kid*0x40000}")
    vals=[88,90,84,86]+[92+2*i for i in range(nmid)]
    for i,sg in enumerate(vals):
        A(f"v_mov_b32 v2, s{sg}")
        A("v_mov_b32 v3, 0")
        A(f"buffer_store_dword v2, v3, s[{srd_base}:{srd_base+3}], s83 offen offset:{4*i}")

class LgkmTracker:
    def __init__(self, A):
        self.A=A; self.n=0; self.done=0
    def issue(self, txt):
        self.A(txt); self.n+=1; return self.n
    def need(self, seq):
        if seq<=self.done: return
        cnt=self.n-seq
        if cnt>15: cnt=15
        self.A(f"s_waitcnt lgkmcnt({cnt})")
        self.done=self.n-cnt
    def all(self):
        if self.done<self.n:
            self.A("s_waitcnt lgkmcnt(0)"); self.done=self.n
```

```python
from common import *
import math, struct
C_SCALE = 0.25*math.log2(math.e)
def f2u(x): return struct.unpack("<I",struct.pack("<f",x))[0]

STG=53248; NB=3
XO=0; WO=16384; SEG=12288
XF=16
WFR=24
ACC=96
def XR(p): return XF+4*p
def WR(p,t): return WFR+36*p+4*t
def AC(t): return ACC+16*t

def gen_k1(name="k1_qkv_kernel"):
    A=Asm()
    A("s_cmp_ge_u32 s2, 256")
    A(f"s_cbranch_scc1 {name}_end")
    stamp_begin(A)
    A("s_load_dwordx16 s[4:19], s[0:1], 0")
    A("s_load_dwordx2 s[24:25], s[0:1], 80")
    A("v_and_b32 v1, 63, v0")
    A("v_lshrrev_b32 v2, 6, v0")
    A("s_nop 0")
    A("v_readfirstlane_b32 s48, v2")
    A("""
    s_and_b32 s49, s2, 7
    s_lshr_b32 s50, s2, 3
    s_and_b32 s51, s49, 1
    s_lshl_b32 s51, s51, 3
    s_and_b32 s52, s50, 7
    s_add_u32 s51, s51, s52
    s_lshr_b32 s52, s49, 1
    s_lshl_b32 s52, s52, 2
    s_lshr_b32 s53, s50, 3
    s_add_u32 s52, s52, s53
    v_lshlrev_b32 v14, 4, v1
    """)
    A("s_cmp_ge_u32 s48, 4")
    A(f"s_cbranch_scc1 {name}_loader")
    A("""
    v_and_b32 v13, 31, v1
    v_lshrrev_b32 v15, 5, v1
    v_lshrrev_b32 v2, 1, v13
    v_and_b32 v2, 7, v2
    s_lshl_b32 s53, s48, 12
    v_lshlrev_b32 v3, 7, v13
    v_add_u32 v3, s53, v3
    """)
    for s in range(4):
        A(f"""
        v_add_u32 v4, {2*s}, v15
        v_xor_b32 v4, v4, v2
        v_lshl_add_u32 v{8+s}, v4, 4, v3
        """)
    A(f"""
    v_and_b32 v4, 15, v1
    v_lshrrev_b32 v5, 2, v4
    v_lshl_add_u32 v5, v15, 3, v5
    v_mul_u32_u24 v5, 0xc0, v5
    v_lshrrev_b32 v6, 4, v1
    v_and_b32 v6, 1, v6
    v_lshl_add_u32 v5, v6, 5, v5
    v_and_b32 v4, 3, v4
    v_lshl_add_u32 v5, v4, 3, v5
    v_add_u32 v12, {WO}, v5
    """)
    for r in range(144): A(f"v_mov_b32 v{ACC+r}, 0")
    T=LgkmTracker(A)
    def read_list(s,p):
        L=[f"ds_read_b128 {vr(XR(p))}, v{8+s}"]
        for t in range(9):
            sg,tt=divmod(t,3)
            for u in range(2):
                L.append(f"ds_read_b64_tr_b16 v[{WR(p,t)+2*u}:{WR(p,t)+2*u+1}], v12 offset:{sg*SEG+(16*s+4*u)*192+tt*64}")
        return L
    def step(p, seqs, nxt, g0=0, pre=None):
        out=[]
        per=[0]*9
        if nxt:
            n=len(nxt)
            for i in range(n): per[g0+(i*7)//n]+=1
        k=0
        for t in range(9):
            T.need(max(seqs[0], seqs[2+2*t]))
            A(f"v_mfma_f32_32x32x16_bf16 {vr(AC(t),16)}, {vr(WR(p,t))}, {vr(XR(p))}, {vr(AC(t),16)}")
            if pre and t==g0: pre()
            for _ in range(per[t]):
                out.append(T.issue(nxt[k])); k+=1
        return out
    stamp_mid(A,0)
    A("s_waitcnt lgkmcnt(0)")
    A("s_barrier")
    stamp_mid(A,1)
    seqs=[T.issue(x) for x in read_list(0,0)]
    A("s_mov_b32 s60, 0")
    A("s_mov_b32 s61, 0")
    A(f"s_mov_b32 s72, {(-2*STG)&0xffffffff:#x}")
    A(f"s_mov_b32 s73, {STG}")
    def adv():
        A("s_barrier")
        A("s_add_u32 s61, s61, 1")
        A("s_cmp_eq_u32 s61, 3")
        A("s_cselect_b32 s62, s72, s73")
        A("s_cselect_b32 s61, 0, s61")
        for r in (8,9,10,11,12): A(f"v_add_u32 v{r}, s62, v{r}")
    A(".p2align 6")
    A.label(f"{name}_loop")
    T.done=0; T.n=19; seqs=list(range(1,20))
    p=0
    for s in range(3):
        seqs=step(p,seqs,read_list(s+1,1-p)); p=1-p
    T.all()
    seqs2=step(p,seqs,read_list(0,1-p),g0=1,pre=adv); p=1-p
    assert p==0
    A("s_add_u32 s60, s60, 1")
    A("s_cmp_lt_u32 s60, 7")
    A(f"s_cbranch_scc1 {name}_loop")
    T.done=0; T.n=19; seqs=list(range(1,20))
    for s in range(3):
        seqs=step(p,seqs,read_list(s+1,1-p)); p=1-p
    T.all()
    step(p,seqs,None)
    stamp_mid(A,2)
    srd(A,36,24,WS_SIZE)
    A("s_lshl_b32 s60, s51, 2")
    A("s_add_u32 s60, s60, s48")
    A("v_and_b32 v2, 31, v1")
    A("v_lshlrev_b32 v2, 5, v2")
    A("v_lshrrev_b32 v3, 5, v1")
    A("v_lshl_add_u32 v2, v3, 4, v2")
    A("s_nop 7")
    for i in range(3):
        a=AC(i)
        A("s_mul_i32 s61, s52, 3")
        A(f"s_add_u32 s61, s61, {i}")
        A("s_lshr_b32 s62, s61, 4")
        A("s_and_b32 s63, s61, 15")
        A("s_cmp_eq_u32 s62, 0")
        A(f"s_cselect_b32 s64, {f2u(C_SCALE):#x}, 1.0")
        A("s_lshl_b32 s65, s62, 21")
        A("s_lshl_b32 s66, s63, 7")
        A("s_add_u32 s66, s66, s60")
        A("s_lshl_b32 s66, s66, 10")
        A("s_add_u32 s65, s65, s66")
        A("s_cmp_eq_u32 s62, 1")
        A(f"s_cbranch_scc0 {name}_nokn{i}")
        for hd in range(2):
            b=a+8*hd
            A(f"v_mul_f32 v{4+hd}, v{b}, v{b}")
            for r in range(1,8): A(f"v_fmac_f32 v{4+hd}, v{b+r}, v{b+r}")
            A(f"v_mov_b32 v6, v{4+hd}")
            A("s_nop 1")
            A(f"v_permlane32_swap_b32 v{4+hd}, v6")
            A("s_nop 1")
            A(f"v_add_f32 v{4+hd}, v{4+hd}, v6")
            dpp_reduce16(A,"v_max_f32",4+hd)
            A("s_nop 1")
            A(f"v_readlane_b32 s68, v{4+hd}, 0")
            A(f"v_readlane_b32 s69, v{4+hd}, 16")
            A("s_nop 1")
            A(f"v_mov_b32 v7, s68")
            A(f"v_max_f32 v{4+hd}, s69, v7")
        A("s_lshl_b32 s67, s63, 7")
        A("s_add_u32 s67, s67, s60")
        A("s_lshl_b32 s67, s67, 2")
        A(f"s_add_u32 s67, s67, {KN}")
        A("v_mov_b32 v7, 0")
        A("v_cmp_eq_u32 vcc, 0, v1")
        A("s_and_saveexec_b64 s[70:71], vcc")
        A("buffer_store_dword v4, v7, s[36:39], s67 offen")
        A("buffer_store_dword v5, v7, s[36:39], s67 offen offset:256")
        A("s_mov_b64 exec, s[70:71]")
        A.label(f"{name}_nokn{i}")
        for r in range(16): A(f"v_mul_f32 v{a+r}, s64, v{a+r}")
        for q in range(8): A(f"v_cvt_pk_bf16_f32 v{WFR+8*i+q}, v{a+2*q}, v{a+2*q+1}")
        A("s_cmp_eq_u32 s62, 2")
        A("s_cselect_b64 vcc, -1, 0")
        A("v_cndmask_b32 v3, v14, v2, vcc")
        A(f"buffer_store_dwordx4 {vr(WFR+8*i)}, v3, s[36:39], s65 offen")
        A(f"s_add_u32 s65, s65, 65536")
        A(f"buffer_store_dwordx4 {vr(WFR+8*i+4)}, v3, s[36:39], s65 offen")
    stamp_mid(A,3)
    A(f"s_mul_i32 s58, s60, {NKS}")
    A("s_mul_i32 s59, s52, 3")
    for u in range(3):
        G=AC(3+u); U=AC(6+u)
        A(f"s_add_u32 s61, s59, {u}")
        A("s_cmp_ge_u32 s61, 43")
        A(f"s_cbranch_scc1 {name}_end2")
        for r0 in range(0,16,4):
            for r in range(r0,r0+4): A(f"v_mul_f32 v{4+r-r0}, 0xbfb8aa3b, v{G+r}")
            for r in range(r0,r0+4): A(f"v_exp_f32 v{4+r-r0}, v{4+r-r0}")
            for r in range(r0,r0+4): A(f"v_mul_f32 v{G+r}, v{G+r}, v{U+r}")
            for r in range(r0,r0+4): A(f"v_add_f32 v{4+r-r0}, 1.0, v{4+r-r0}")
            for r in range(r0,r0+4): A(f"v_rcp_f32 v{4+r-r0}, v{4+r-r0}")
            A("s_nop 0")
            for r in range(r0,r0+4): A(f"v_mul_f32 v{G+r}, v{G+r}, v{4+r-r0}")
        for i in range(8): A(f"v_cvt_pk_bf16_f32 v{U+i}, v{G+2*i}, v{G+2*i+1}")
        A("s_lshl_b32 s62, s61, 1")
        A("s_add_u32 s62, s62, s58")
        A("s_add_u32 s62, s62, 32")
        A("s_lshl_b32 s62, s62, 10")
        A(f"s_add_u32 s62, s62, {AF}")
        A(f"buffer_store_dwordx4 {vr(U)}, v14, s[36:39], s62 offen")
        A(f"buffer_store_dwordx4 {vr(U+4)}, v14, s[36:39], s62 offen offset:1024")
    A.label(f"{name}_end2")
    stamp_end(A,0,48,8,nmid=4)
    A("s_endpgm")
    A.label(f"{name}_loader")
    A("s_sub_u32 s49, s48, 4")
    A("""
    v_lshrrev_b32 v5, 3, v1
    v_lshlrev_b32 v5, 10, v5
    v_and_b32 v6, 7, v1
    v_lshrrev_b32 v7, 4, v1
    v_xor_b32 v6, v6, v7
    v_lshl_add_u32 v3, v6, 4, v5
    v_xor_b32 v4, 64, v3
    """)
    A("s_mul_i32 s53, s49, 192")
    for ii in range(3):
        A(f"""
        v_add_u32 v11, s53, v1
        v_add_u32 v11, {64*ii}, v11
        v_mul_u32_u24 v12, 0x1556, v11
        v_lshrrev_b32 v12, 16, v12
        v_mul_u32_u24 v13, 12, v12
        v_sub_u32 v13, v11, v13
        v_lshlrev_b32 v13, 4, v13
        v_mul_u32_u24 v11, 0xc00, v12
        v_add_u32 v{5+ii}, v11, v13
        v_mul_u32_u24 v11, 0xac0, v12
        v_add_u32 v{8+ii}, v11, v13
        """)
    A("""
    s_lshl_b32 s56, s51, 7
    s_lshl_b32 s57, s49, 5
    s_add_u32 s56, s56, s57
    s_lshl_b32 s56, s56, 10
    s_mul_i32 s57, s52, 192
    s_lshl_b32 s58, s49, 12
    s_mul_i32 s59, s49, 3072
    """)
    A("s_waitcnt lgkmcnt(0)")
    srd(A,28,4,2048*1024)
    srd(A,32,6,512*3072)
    srd(A,40,12,512*2752)
    srd(A,44,14,512*2752)
    A("s_cmp_eq_u32 s52, 15")
    A("s_cselect_b32 s42, 0, s42")
    A("s_cselect_b32 s46, 0, s46")
    srd(A,36,24,WS_SIZE)
    def issue_stage(kt):
        base=(kt%NB)*STG
        for i in range(4):
            A(f"s_add_u32 m0, s58, {base+XO+i*1024}")
            A(f"s_add_u32 s60, s56, {i*8192+kt*128}")
            A(f"buffer_load_dwordx4 v{3+(i&1)}, s[28:31], s60 offen lds")
        for sg in range(3):
            sd=(32,40,44)[sg]; rs=(3072,2752,2752)[sg]; vb=(5,8,8)[sg]
            for ii in range(3):
                A(f"s_add_u32 m0, s59, {base+WO+sg*SEG+ii*1024}")
                A(f"s_add_u32 s60, s57, {kt*64*rs}")
                A(f"buffer_load_dwordx4 v{vb+ii}, s[{sd}:{sd+3}], s60 offen lds")
    for kt in range(3): issue_stage(kt)
    stamp_mid(A,0)
    A("s_waitcnt vmcnt(26)")
    A("s_barrier")
    stamp_mid(A,1)
    for i in range(1,8):
        if i<=6: A("s_waitcnt vmcnt(13)")
        else: A("s_waitcnt vmcnt(5)")
        A("s_barrier")
        if i+2<=7: issue_stage(i+2)
        if i==6:
            repack_issue(A)
    stamp_mid(A,2)
    A("s_waitcnt vmcnt(0)")
    repack_finish(A)
    gate_compute(A)
    stamp_mid(A,3)
    stamp_end(A,0,48,8,nmid=4)
    A.label(f"{name}_end")
    A("s_endpgm")
    return kernel_header(name)+A.text(), kernel_desc(name,256), NB*STG

RB_LDS = 2*STG
def repack_issue(A):
    A("s_lshl_b32 s70, s2, 2")
    A("s_add_u32 s70, s70, s49")
    A("v_lshrrev_b32 v23, 2, v1")
    A("v_and_b32 v24, 3, v1")
    A("v_lshlrev_b32 v24, 4, v24")
    A("v_lshl_add_u32 v26, v23, 10, v24")
    A("s_lshl_b32 s71, s49, 11")
    A(f"s_add_u32 s71, s71, {RB_LDS}")
    for t in range(2):
        A(f"s_add_u32 s77, s70, {1024*t}")
        if t==1:
            A("s_cmp_ge_u32 s77, 1888")
            A("s_cselect_b32 s78, 1888, 0")
            A("s_sub_u32 s77, s77, s78")
        A("s_cmp_ge_u32 s77, 1376")
        A("s_cselect_b32 s80, s8, s16")
        A("s_cselect_b32 s81, s9, s17")
        A(f"s_mov_b32 s82, {1376*1024}")
        A(f"s_cselect_b32 s82, {512*1024}, s82")
        A("s_cselect_b32 s78, 1376, 0")
        A("s_cselect_b32 s79, 0, 32")
        A("s_and_b32 s81, s81, 0xffff")
        A("s_mov_b32 s83, 0x00020000")
        A("s_sub_u32 s77, s77, s78")
        A("s_lshr_b32 s78, s77, 4")
        A("s_and_b32 s77, s77, 15")
        A("s_lshl_b32 s74, s78, 14")
        A("s_lshl_b32 s75, s77, 6")
        A("s_add_u32 s74, s74, s75")
        A(f"s_mul_i32 s77, s77, {NKS}")
        A("s_add_u32 s77, s77, s78")
        A("s_add_u32 s77, s77, s79")
        A("s_lshl_b32 s77, s77, 10")
        A(f"s_add_u32 s{72+t}, s77, {WF3}")
        A(f"s_add_u32 m0, s71, {t*1024}")
        A("s_nop 0")
        A("buffer_load_dwordx4 v26, s[80:83], s74 offen lds")
    srd(A,80,18,1024)
    A("""
    s_lshl_b32 s54, s51, 7
    s_lshl_b32 s55, s52, 3
    s_add_u32 s54, s54, s55
    s_lshl_b32 s55, s49, 1
    s_add_u32 s54, s54, s55
    s_lshl_b32 s55, s54, 10
    """)
    A("buffer_load_dwordx4 v[112:115], v14, s[28:31], s55 offen")
    A("buffer_load_dwordx4 v[116:119], v14, s[28:31], s55 offen offset:1024")
    A("buffer_load_dwordx4 v[120:123], v14, s[80:83], 0 offen")

def repack_finish(A):
    A("""
    v_and_b32 v17, 15, v1
    v_lshrrev_b32 v18, 2, v17
    v_lshrrev_b32 v19, 4, v1
    v_and_b32 v19, 1, v19
    v_lshlrev_b32 v19, 5, v19
    v_and_b32 v17, 3, v17
    v_lshl_add_u32 v19, v17, 3, v19
    v_lshrrev_b32 v20, 5, v1
    v_lshl_add_u32 v21, v20, 2, v18
    v_lshl_add_u32 v21, v21, 6, v19
    v_add_u32 v21, s71, v21
    """)
    for slot in range(2):
        r=80+4*slot
        A(f"ds_read_b64_tr_b16 v[{r}:{r+1}], v21 offset:{slot*1024}")
        A(f"ds_read_b64_tr_b16 v[{r+2}:{r+3}], v21 offset:{slot*1024+512}")
    for slot in range(2):
        r=80+4*slot
        A(f"s_waitcnt lgkmcnt({2*(1-slot)})")
        A(f"buffer_store_dwordx4 {vr(r)}, v14, s[36:39], s{72+slot} offen")

def gate_compute(A):
    for i in range(4):
        A(f"v_lshlrev_b32 v{100+2*i}, 16, v{120+i}")
        A(f"v_and_b32 v{101+2*i}, 0xffff0000, v{120+i}")
    for row in range(2):
        src=112+4*row; acc=108+row
        for i in range(4):
            A(f"v_lshlrev_b32 v110, 16, v{src+i}")
            A(f"v_and_b32 v111, 0xffff0000, v{src+i}")
            if i==0: A(f"v_mul_f32 v{acc}, v110, v{100}")
            else: A(f"v_fmac_f32 v{acc}, v110, v{100+2*i}")
            A(f"v_fmac_f32 v{acc}, v111, v{101+2*i}")
        dpp_reduce16(A,"v_add_f32",acc)
        A("s_nop 1")
        for q in range(4): A(f"v_readlane_b32 s{82+q}, v{acc}, {16*q}")
        A("s_nop 1")
        A(f"v_mov_b32 v{acc}, s82")
        A(f"v_add_f32 v{acc}, s83, v{acc}")
        A(f"v_add_f32 v{acc}, s84, v{acc}")
        A(f"v_add_f32 v{acc}, s85, v{acc}")
        A(f"v_mul_f32 v{acc}, 0xbfb8aa3b, v{acc}")
        A(f"v_exp_f32 v{acc}, v{acc}")
        A("s_nop 0")
        A(f"v_add_f32 v{acc}, 1.0, v{acc}")
        A(f"v_rcp_f32 v{acc}, v{acc}")
        A("s_nop 0")
    A("s_lshl_b32 s82, s54, 2")
    A(f"s_add_u32 s82, s82, {GOFF}")
    A("v_mov_b32 v110, 0")
    A("v_cmp_eq_u32 vcc, 0, v1")
    A("s_and_saveexec_b64 s[66:67], vcc")
    A("buffer_store_dword v108, v110, s[36:39], s82 offen")
    A("buffer_store_dword v109, v110, s[36:39], s82 offen offset:4")
    A("s_mov_b64 exec, s[66:67]")
```

```python
from common import *
import os
PSW=int(os.environ.get("PSW","6"))
def gen_k2b(name="k2b_attn_kernel"):
    A=Asm()
    A("s_cmp_ge_u32 s2, 256")
    A(f"s_cbranch_scc1 {name}_end")
    stamp_begin(A)
    A("s_load_dwordx2 s[6:7], s[0:1], 80")
    A("""
    v_and_b32 v1, 63, v0
    v_lshrrev_b32 v2, 6, v0
    s_nop 0
    v_readfirstlane_b32 s48, v2
    s_and_b32 s49, s2, 7
    s_lshr_b32 s50, s2, 3
    s_and_b32 s51, s50, 3
    s_lshl_b32 s51, s51, 3
    s_add_u32 s51, s51, s49
    s_lshr_b32 s52, s50, 2
    """)
    A("s_lshl_b32 s53, s52, 3")
    A("s_add_u32 s53, s53, s48")
    A("v_lshlrev_b32 v4, 4, v1")
    A("s_waitcnt lgkmcnt(0)")
    srd(A,36,6,WS_SIZE)
    A("s_lshl_b32 s54, s51, 6")
    A("s_add_u32 s54, s54, s53")
    A("s_lshl_b32 s54, s54, 10")
    A(f"s_add_u32 s54, s54, {QF}")
    A("buffer_load_dwordx4 v[8:11], v4, s[36:39], s54 offen")
    A("s_lshl_b32 s54, s51, 8")
    A(f"s_add_u32 s54, s54, {KN}")
    A("v_lshlrev_b32 v5, 2, v1")
    A("buffer_load_dword v6, v5, s[36:39], s54 offen")
    A("v_and_b32 v5, 31, v1")
    A("v_lshlrev_b32 v5, 2, v5")
    A("s_lshl_b32 s54, s53, 7")
    A(f"s_add_u32 s54, s54, {GOFF}")
    A("buffer_load_dword v7, v5, s[36:39], s54 offen")
    A("s_lshl_b32 s55, s51, 16")
    A("s_lshl_b32 s56, s48, 13")
    A("s_add_u32 s55, s55, s56")
    for i in range(8):
        A(f"s_add_u32 m0, s56, {i*1024}")
        A(f"s_add_u32 s57, s55, {KF+i*1024}")
        A("buffer_load_dwordx4 v4, s[36:39], s57 offen lds")
        A(f"s_add_u32 m0, s56, {65536+i*1024}")
        A(f"s_add_u32 s57, s55, {VF+i*1024}")
        A("buffer_load_dwordx4 v4, s[36:39], s57 offen lds")
    CB=131072; UN=8
    S=[32,48]; Cm=64; O=80; P=96; KFR=[104,108]; VFR=[[112,116],[120,124]]
    A("v_and_b32 v12, 1, v0")
    A("v_cmp_eq_u32 vcc, 0, v12")
    A("v_mov_b32 v13, 0x3f80")
    A("s_nop 1")
    A("v_cndmask_b32 v24, 0, v13, vcc")
    A("v_mov_b32 v25, 0")
    A("v_mov_b32 v26, v24")
    A("v_mov_b32 v27, 0")
    A("v_lshlrev_b32 v12, 4, v0")
    A(f"v_add_u32 v12, {CB}, v12")
    A("ds_write_b128 v12, v[24:27]")
    A("ds_write_b128 v12, v[24:27] offset:8192")
    A(f"""
    v_lshrrev_b32 v14, 5, v1
    v_and_b32 v15, 15, v1
    v_lshrrev_b32 v16, 2, v15
    v_lshl_add_u32 v16, v14, 2, v16
    v_lshlrev_b32 v16, 5, v16
    v_and_b32 v17, 1, v15
    v_lshl_add_u32 v16, v17, 4, v16
    v_lshrrev_b32 v17, 1, v15
    v_and_b32 v17, 1, v17
    v_lshl_add_u32 v16, v17, 3, v16
    v_add_u32 v16, 0x10000, v16
    v_xor_b32 v17, 1, v14
    v_lshlrev_b32 v17, 7, v17
    v_and_b32 v18, 3, v15
    v_lshl_add_u32 v17, v18, 3, v17
    v_add_u32 v17, {CB}, v17
    v_and_b32 v18, 16, v1
    v_cmp_eq_u32 vcc, 0, v18
    v_mov_b32 v18, {UN*1024}
    s_nop 1
    v_cndmask_b32 v15, v17, v16, vcc
    v_cndmask_b32 v21, 0, v18, vcc
    """)
    A("s_waitcnt vmcnt(16)")
    for i in range(4):
        A(f"v_lshlrev_b32 v16, 16, v{8+i}")
        A(f"v_and_b32 v17, 0xffff0000, v{8+i}")
        if i==0: A("v_mul_f32 v18, v16, v16")
        else: A("v_fmac_f32 v18, v16, v16")
        A("v_fmac_f32 v18, v17, v17")
    A("v_mov_b32 v19, v18")
    A("s_nop 1")
    A("v_permlane32_swap_b32 v18, v19")
    A("s_nop 1")
    A("v_add_f32 v18, v18, v19")
    dpp_reduce16(A,"v_max_f32",6)
    A("s_nop 1")
    for q in range(4): A(f"v_readlane_b32 s{62+q}, v6, {16*q}")
    A("s_nop 1")
    A("v_mov_b32 v6, s62")
    A("v_max_f32 v6, s63, v6")
    A("v_max_f32 v6, s64, v6")
    A("v_max_f32 v6, s65, v6")
    A("v_mul_f32 v18, v18, v6")
    A("v_sqrt_f32 v18, v18")
    A("s_nop 0")
    A("v_mul_f32 v18, 0x3f828f5c, v18")
    stamp_mid(A,0)
    A("s_waitcnt vmcnt(0) lgkmcnt(0)")
    A("s_barrier")
    stamp_mid(A,1)
    A("v_cmp_lt_f32 vcc, 0x42200000, v18")
    A("v_lshlrev_b32 v14, 4, v1")
    A("s_nop 1")
    A(f"s_cbranch_vccz {name}_fast")
    A("v_mov_b32 v18, 0xff7fffff")
    A("s_mov_b32 s66, 0")
    A("v_mov_b32 v20, v14")
    A.label(f"{name}_mx")
    A(f"ds_read_b128 {vr(KFR[0])}, v20")
    A("s_waitcnt lgkmcnt(0)")
    A(f"v_mfma_f32_32x32x16_bf16 {vr(S[0],16)}, {vr(KFR[0])}, v[8:11], 0")
    A("s_nop 15")
    A("s_nop 3")
    for r in range(0,16,2): A(f"v_max3_f32 v18, v18, v{S[0]+r}, v{S[0]+r+1}")
    A("v_add_u32 v20, 1024, v20")
    A("s_add_u32 s66, s66, 1")
    A("s_cmp_lt_u32 s66, 64")
    A(f"s_cbranch_scc1 {name}_mx")
    A("v_mov_b32 v19, v18")
    A("s_nop 1")
    A("v_permlane32_swap_b32 v18, v19")
    A("s_nop 1")
    A("v_max_f32 v18, v18, v19")
    A.label(f"{name}_fast")
    for r in range(16): A(f"v_sub_f32 v{Cm+r}, 0, v18")
    for r in range(16): A(f"v_mov_b32 v{O+r}, 0")
    def kread(t,buf): A(f"ds_read_b128 {vr(KFR[buf])}, v14 offset:{(t)*1024}")
    def vread(t,buf):
        for sset in range(2):
            for u in range(2):
                r=VFR[buf][sset]+2*u
                A(f"ds_read_b64_tr_b16 v[{r}:{r+1}], v15 offset:{t*1024+sset*512+u*256}")
    kread(0,0)
    A("s_waitcnt lgkmcnt(0)")
    A(f"v_mfma_f32_32x32x16_bf16 {vr(S[0],16)}, {vr(KFR[0])}, v[8:11], {vr(Cm,16)}")
    kread(1,1); vread(0,0)
    for r in range(4): A(f"v_mov_b32 v{P+4+r}, 0")
    for r in range(4): A(f"v_mov_b32 v{VFR[1][1]+r}, 0")
    for r in range(2): A(f"v_mov_b32 v{S[1]+14+r}, 0")
    A("s_mov_b32 s66, 0")
    A("s_cmp_ge_u32 s48, 4")
    A(f"s_cbranch_scc0 {name}_noprio")
    A("s_setprio 1")
    A.label(f"{name}_noprio")
    A("s_nop 7")
    A("s_nop 7")
    A(".p2align 6")
    A.label(f"{name}_loop")
    for t in range(UN):
        cur=t&1; nxt=1-cur
        E=lambda i: A(f"v_exp_f32 v{S[cur]+i}, v{S[cur]+i}")
        C=lambda i: A(f"v_cvt_pk_bf16_f32 v{P+i}, v{S[cur]+2*i}, v{S[cur]+2*i+1}")
        E(0);E(1)
        A(f"v_cvt_pk_bf16_f32 v{P+7}, v{S[nxt]+14}, v{S[nxt]+15}")
        kread(t+2,cur)
        E(2)
        A(f"v_mfma_f32_32x32x16_bf16 {vr(O,16)}, {vr(VFR[nxt][1])}, {vr(P+4)}, {vr(O,16)}")
        vread(t+1,nxt)
        E(3);C(0);E(4);E(5);C(1);E(6)
        A("s_waitcnt lgkmcnt(5)")
        A(f"v_mfma_f32_32x32x16_bf16 {vr(S[nxt],16)}, {vr(KFR[nxt])}, v[8:11], {vr(Cm,16)}")
        E(7);C(2);E(8);E(9);C(3);E(10);E(11)
        A(f"v_mfma_f32_32x32x16_bf16 {vr(O,16)}, {vr(VFR[cur][0])}, {vr(P)}, {vr(O,16)}")
        C(4);E(12);E(13);C(5);E(14);E(15);C(6)
    A(f"v_add_u32 v14, {UN*1024}, v14")
    A("v_add_u32 v15, v21, v15")
    A("s_add_u32 s66, s66, 1")
    A(f"s_cmp_eq_u32 s66, {PSW}")
    A(f"s_cbranch_scc0 {name}_nosw")
    A("s_setprio 0")
    A.label(f"{name}_nosw")
    A(f"s_cmp_lt_u32 s66, {64//UN}")
    A(f"s_cbranch_scc1 {name}_loop")
    stamp_mid(A,2)
    A(f"v_cvt_pk_bf16_f32 v{P+7}, v{S[1]+14}, v{S[1]+15}")
    A("s_nop 1")
    A(f"v_mfma_f32_32x32x16_bf16 {vr(O,16)}, {vr(VFR[1][1])}, {vr(P+4)}, {vr(O,16)}")
    A("s_waitcnt lgkmcnt(0)")
    A("s_nop 15")
    A("s_nop 7")
    A(f"v_rcp_f32 v16, v{O+8}")
    A("s_nop 0")
    A("v_mul_f32 v16, v16, v7")
    for r in range(8): A(f"v_mul_f32 v{O+r}, v{O+r}, v16")
    for i in range(4): A(f"v_cvt_pk_bf16_f32 v{P+i}, v{O+2*i}, v{O+2*i+1}")
    A(f"s_mul_i32 s54, s53, {NKS}")
    A("s_add_u32 s54, s54, s51")
    A("s_lshl_b32 s54, s54, 10")
    A(f"s_add_u32 s54, s54, {AF}")
    A(f"buffer_store_dwordx4 {vr(P)}, v4, s[36:39], s54 offen")
    stamp_end(A,2,48,8,nmid=4)
    A.label(f"{name}_end")
    A("s_endpgm")
    return kernel_header(name)+A.text(), kernel_desc(name,128), 148*1024
```

```python
from common import *
def gen_k3(name=NAME+"_kernel"):
    A=Asm()
    A("s_cmp_ge_u32 s2, 256")
    A(f"s_cbranch_scc1 {name}_end")
    stamp_begin(A)
    A("s_load_dwordx2 s[4:5], s[0:1], 64")
    A("s_load_dwordx2 s[6:7], s[0:1], 80")
    A("""
    v_and_b32 v1, 63, v0
    v_lshrrev_b32 v2, 6, v0
    s_nop 0
    v_readfirstlane_b32 s48, v2
    s_and_b32 s49, s2, 7
    s_lshr_b32 s50, s2, 3
    s_and_b32 s51, s50, 3
    s_lshl_b32 s52, s49, 2
    s_add_u32 s51, s51, s52
    s_lshr_b32 s52, s50, 2
    """)
    A("v_lshlrev_b32 v4, 4, v1")
    A("s_waitcnt lgkmcnt(0)")
    srd(A,28,4,2048*1024)
    srd(A,36,6,WS_SIZE)
    A("s_mul_i32 s53, s48, 29")
    A("s_add_u32 s53, s53, 3")
    A("s_cmp_eq_u32 s48, 0")
    A("s_cselect_b32 s53, 0, s53")
    A("s_cselect_b32 s54, 32, 29")
    A("s_cmp_eq_u32 s48, 3")
    A("s_cselect_b32 s54, 28, s54")
    A(f"s_mul_i32 s55, s51, {2*NKS}")
    A("s_add_u32 s55, s55, s53")
    A("s_lshl_b32 s55, s55, 10")
    A(f"s_add_u32 s55, s55, {AF}")
    A(f"s_mul_i32 s56, s52, {2*NKS}")
    A("s_add_u32 s56, s56, s53")
    A("s_lshl_b32 s56, s56, 10")
    A(f"s_add_u32 s56, s56, {WF3}")
    A(f"v_add_u32 v5, {NKS*1024}, v4")
    ACC=16
    FR=80; NB=4
    def fr(b,i): return FR+16*b+4*i
    def loads(b):
        A(f"buffer_load_dwordx4 {vr(fr(b,0))}, v4, s[36:39], s55 offen")
        A(f"buffer_load_dwordx4 {vr(fr(b,1))}, v5, s[36:39], s55 offen")
        A(f"buffer_load_dwordx4 {vr(fr(b,2))}, v4, s[36:39], s56 offen")
        A(f"buffer_load_dwordx4 {vr(fr(b,3))}, v5, s[36:39], s56 offen")
        A("s_add_u32 s55, s55, 1024")
        A("s_add_u32 s56, s56, 1024")
    for r in range(64): A(f"v_mov_b32 v{ACC+r}, 0")
    def mf(b):
        for f in range(2):
            for t in range(2):
                a=ACC+16*(2*f+t)
                A(f"v_mfma_f32_32x32x16_bf16 {vr(a,16)}, {vr(fr(b,2+f))}, {vr(fr(b,t))}, {vr(a,16)}")
    stamp_mid(A,0)
    loads(0); loads(1); loads(2)
    A("s_mov_b32 s57, 0")
    A.label(f"{name}_loop")
    for b in range(4):
        loads((b+3)%4)
        A("s_waitcnt vmcnt(12)")
        mf(b)
    A("s_add_u32 s57, s57, 1")
    A("s_cmp_lt_u32 s57, 7")
    A(f"s_cbranch_scc1 {name}_loop")
    A("s_cmp_eq_u32 s54, 28")
    A(f"s_cbranch_scc1 {name}_red")
    A("s_waitcnt vmcnt(8)")
    mf(0)
    A("s_cmp_eq_u32 s54, 29")
    A(f"s_cbranch_scc1 {name}_red")
    loads(3)
    A("s_waitcnt vmcnt(8)")
    mf(1)
    A("s_waitcnt vmcnt(4)")
    mf(2)
    A("s_waitcnt vmcnt(0)")
    mf(3)
    A.label(f"{name}_red")
    stamp_mid(A,1)
    A("s_waitcnt vmcnt(0)")
    A("s_lshl_b32 s58, s51, 6")
    A("s_and_b32 s59, s48, 1")
    A("s_lshl_b32 s59, s59, 5")
    A("s_add_u32 s58, s58, s59")
    A("s_lshl_b32 s58, s58, 2")
    A(f"s_add_u32 s58, s58, {GOFF}")
    A("v_and_b32 v11, 31, v1")
    A("v_lshlrev_b32 v11, 2, v11")
    A("buffer_load_dword v12, v11, s[36:39], s58 offen")
    A("s_lshl_b32 s58, s48, 14")
    A("v_add_u32 v6, s58, v4")
    A("s_nop 15")
    for tl in range(4):
        for q in range(4):
            A(f"ds_write_b128 v6, {vr(ACC+16*tl+4*q)} offset:{(tl*4+q)*1024}")
    A("s_waitcnt lgkmcnt(0)")
    A("s_barrier")
    A("""
    v_and_b32 v7, 31, v1
    v_lshrrev_b32 v8, 5, v1
    v_lshlrev_b32 v9, 4, v7
    v_lshl_add_u32 v9, v8, 10, v9
    s_lshl_b32 s58, s48, 12
    v_add_u32 v9, s58, v9
    """)
    for i in range(2):
        for p in range(4):
            A(f"ds_read_b128 {vr(80+16*i+8*(p&1)+32*(p>>1))}, v9 offset:{p*16384+i*2048}")
            A(f"ds_read_b128 {vr(84+16*i+8*(p&1)+32*(p>>1))}, v9 offset:{p*16384+i*2048+512}")
    A("s_waitcnt lgkmcnt(0) vmcnt(0)")
    A("v_sub_f32 v12, 1.0, v12")
    for i in range(2):
        b0=80+16*i
        for e in range(8):
            A(f"v_add_f32 v{b0+32+e}, v{b0+32+e}, v{b0+40+e}")
            A(f"v_add_f32 v{b0+8+e}, v{b0+8+e}, v{b0+32+e}")
            A(f"v_fmac_f32 v{b0+e}, v{b0+8+e}, v12")
        for e in range(4): A(f"v_cvt_pk_bf16_f32 v{16+4*i+e}, v{b0+2*e}, v{b0+2*e+1}")
    A("""
    s_lshl_b32 s59, s51, 6
    s_and_b32 s60, s48, 1
    s_lshl_b32 s60, s60, 5
    s_add_u32 s59, s59, s60
    s_lshl_b32 s59, s59, 10
    s_lshl_b32 s60, s52, 7
    s_add_u32 s59, s59, s60
    s_lshr_b32 s60, s48, 1
    s_lshl_b32 s60, s60, 6
    s_add_u32 s59, s59, s60
    v_lshlrev_b32 v10, 10, v7
    v_lshl_add_u32 v10, v8, 4, v10
    """)
    A("buffer_store_dwordx4 v[16:19], v10, s[28:31], s59 offen")
    A("buffer_store_dwordx4 v[20:23], v10, s[28:31], s59 offen offset:32")
    stamp_end(A,3,48,4,nmid=4)
    A.label(f"{name}_end")
    A("s_endpgm")
    return kernel_header(name)+A.text(), kernel_desc(name,144), 65536
```

```python
import sys
from common import *
from k1 import gen_k1
from k2b import gen_k2b
from k3 import gen_k3
def build(out):
    ks=[(gen_k1(),"k1_qkv_kernel",512),(gen_k2b(),"k2b_attn_kernel",512),(gen_k3(),NAME+"_kernel",256)]
    hdr=open("cdna_kernels/"+NAME+".s.ref").read().split("; Override")[0]
    t=hdr
    for (code,desc,lds),n,blk in ks:
        t+=f"; @launch kernel={n} grid=(256,1,1) block=({blk},1,1) lds={lds}\n"
    t+='.amdgcn_target "amdgcn-amd-amdhsa--gfx950"\n.text\n'
    for (code,desc,lds),n,blk in ks: t+=code
    t+='.section .rodata,"a"\n'
    for (code,desc,lds),n,blk in ks: t+=desc
    open(out,"w").write(t)
if __name__=="__main__":
    build(sys.argv[1] if len(sys.argv)>1 else "v2.s")
```

```python
from common import *
import math
C_SCALE = 0.25*math.log2(math.e)
import struct
def f2u(x): return struct.unpack("<I",struct.pack("<f",x))[0]

def gen_k1(name="k1_qkv_kernel"):
    A=Asm()
    STG=28672; NB=5
    A("s_cmp_ge_u32 s2, 256")
    A(f"s_cbranch_scc1 {name}_end")
    stamp_begin(A)
    A("s_load_dwordx16 s[4:19], s[0:1], 0")
    A("s_load_dwordx2 s[24:25], s[0:1], 80")
    A("v_and_b32 v1, 63, v0")
    A("v_lshrrev_b32 v2, 6, v0")
    A("s_nop 0")
    A("v_readfirstlane_b32 s48, v2")
    A("""
    s_and_b32 s49, s2, 7
    s_lshr_b32 s50, s2, 3
    s_and_b32 s51, s49, 3
    s_lshl_b32 s51, s51, 2
    s_and_b32 s52, s50, 3
    s_add_u32 s51, s51, s52
    s_lshr_b32 s52, s49, 2
    s_lshl_b32 s52, s52, 3
    s_lshr_b32 s53, s50, 2
    s_add_u32 s52, s52, s53
    """)
    A("""
    v_lshrrev_b32 v5, 3, v1
    v_lshlrev_b32 v5, 10, v5
    v_and_b32 v6, 7, v1
    v_lshrrev_b32 v7, 4, v1
    v_xor_b32 v6, v6, v7
    v_lshl_add_u32 v3, v6, 4, v5
    v_xor_b32 v4, 64, v3
    """)
    A("s_mul_i32 s53, s48, 192")
    for ii in range(3):
        A(f"""
        v_add_u32 v8, s53, v1
        v_add_u32 v8, {64*ii}, v8
        v_mul_u32_u24 v9, 0x1556, v8
        v_lshrrev_b32 v9, 16, v9
        v_mul_u32_u24 v10, 12, v9
        v_sub_u32 v10, v8, v10
        v_lshrrev_b32 v11, 2, v10
        v_and_b32 v10, 3, v10
        v_lshlrev_b32 v10, 4, v10
        v_lshl_add_u32 v10, v11, 10, v10
        v_mul_u32_u24 v9, 0xc00, v9
        v_add_u32 v{5+ii}, v9, v10
        """)
    A("""
    v_and_b32 v13, 31, v1
    v_lshrrev_b32 v14, 5, v1
    v_lshrrev_b32 v15, 1, v13
    v_and_b32 v15, 7, v15
    s_lshl_b32 s53, s48, 12
    v_lshlrev_b32 v16, 7, v13
    v_add_u32 v16, s53, v16
    """)
    for s in range(4):
        A(f"""
        v_add_u32 v17, {2*s}, v14
        v_xor_b32 v17, v17, v15
        v_lshl_add_u32 v{8+s}, v17, 4, v16
        """)
    A("""
    v_and_b32 v17, 15, v1
    v_lshrrev_b32 v18, 2, v17
    v_lshl_add_u32 v18, v14, 3, v18
    v_mul_u32_u24 v18, 0xc0, v18
    v_lshrrev_b32 v19, 4, v1
    v_and_b32 v19, 1, v19
    v_lshl_add_u32 v18, v19, 5, v18
    v_and_b32 v17, 3, v17
    v_lshl_add_u32 v18, v17, 3, v18
    v_add_u32 v12, 0x4000, v18
    """)
    A("""
    v_and_b32 v17, 15, v1
    v_lshrrev_b32 v18, 2, v17
    v_lshlrev_b32 v19, 5, v19
    v_and_b32 v17, 3, v17
    v_lshl_add_u32 v19, v17, 3, v19
    v_lshl_add_u32 v20, v14, 3, v18
    v_lshl_add_u32 v20, v20, 6, v19
    v_lshl_add_u32 v21, v14, 2, v18
    v_lshl_add_u32 v21, v21, 6, v19
    """)
    A("s_waitcnt lgkmcnt(0)")
    srd(A,28,4,2048*1024)
    srd(A,32,6,512*3072)
    srd(A,36,24,WS_SIZE)
    srd(A,44,18,1024)
    A("""
    s_lshl_b32 s54, s51, 7
    s_lshl_b32 s55, s52, 3
    s_add_u32 s54, s54, s55
    s_lshl_b32 s55, s48, 1
    s_add_u32 s54, s54, s55
    s_lshl_b32 s55, s54, 10
    v_lshlrev_b32 v22, 4, v1
    """)
    A("buffer_load_dwordx4 v[112:115], v22, s[28:31], s55 offen")
    A("buffer_load_dwordx4 v[116:119], v22, s[28:31], s55 offen offset:1024")
    A("buffer_load_dwordx4 v[120:123], v22, s[44:47], 0 offen")
    A("""
    s_lshl_b32 s56, s51, 7
    s_lshl_b32 s57, s48, 5
    s_add_u32 s56, s56, s57
    s_lshl_b32 s56, s56, 10
    s_lshl_b32 s57, s52, 6
    s_lshl_b32 s58, s48, 12
    s_mul_i32 s59, s48, 3072
    """)
    def issue_stage(kt):
        b=kt%NB
        base=b*STG
        for i in range(4):
            A(f"s_add_u32 m0, s58, {base+i*1024}")
            A(f"s_add_u32 s60, s56, {i*8192+kt*128}")
            A(f"buffer_load_dwordx4 v{3+(i&1)}, s[28:31], s60 offen lds")
        for ii in range(3):
            A(f"s_add_u32 m0, s59, {base+16384+ii*1024}")
            A(f"s_add_u32 s60, s57, {kt*64*3072}")
            A(f"buffer_load_dwordx4 v{5+ii}, s[32:35], s60 offen lds")
    for kt in range(5): issue_stage(kt)
    def XR(p): return 80+4*p
    def WR(p,t): return 88+12*p+4*t
    def reads(s,p):
        A(f"ds_read_b128 {vr(XR(p))}, v{8+s}")
        for t in range(3):
            for u in range(2):
                A(f"ds_read_b64_tr_b16 v[{WR(p,t)+2*u}:{WR(p,t)+2*u+1}], v12 offset:{(16*s+4*u)*192+t*64}")
    def mfmas(p,first):
        c=lambda a: "0" if first else vr(a,16)
        A(f"v_mfma_f32_32x32x16_bf16 {vr(32,16)}, {vr(WR(p,0))}, {vr(XR(p))}, {c(32)}")
        A(f"v_mfma_f32_32x32x16_bf16 {vr(48,16)}, {vr(WR(p,1))}, {vr(XR(p))}, {c(48)}")
        A(f"v_mfma_f32_32x32x16_bf16 {vr(64,16)}, {vr(XR(p))}, {vr(WR(p,2))}, {c(64)}")
    def advance(kt_next):
        b=kt_next%NB
        d = STG if b!=0 else -(NB-1)*STG
        for r in (8,9,10,11,12):
            if d>0: A(f"v_add_u32 v{r}, {d}, v{r}")
            else: A(f"v_subrev_u32 v{r}, {-d}, v{r}")
    stamp_mid(A,0)
    A("s_waitcnt vmcnt(28)")
    A("s_barrier")
    stamp_mid(A,1)
    reads(0,0)
    waits_end={0:21,1:21,2:21,3:21,4:15+4,5:7+5,6:5}
    y={0:21,1:21,2:21,3:21,4:14+5,5:7+5,6:5}
    p=0
    for kt in range(8):
        for s in range(4):
            first=(kt==0 and s==0)
            if s<3:
                reads(s+1,1-p)
                A("s_waitcnt lgkmcnt(7)")
                mfmas(p,first)
            else:
                A("s_waitcnt lgkmcnt(0)")
                if kt<7:
                    A(f"s_waitcnt vmcnt({y[kt]})")
                    A("s_barrier")
                    if kt+5<=7: issue_stage(kt+5)
                    if kt==3: repack_issue(A)
                    advance(kt+1)
                    reads(0,1-p)
                mfmas(p,False)
            p=1-p
    stamp_mid(A,2)
    A("s_waitcnt vmcnt(0)")
    repack_finish(A)
    gate_compute(A)
    stamp_mid(A,3)
    A("s_nop 7")
    A("s_lshl_b32 s60, s51, 2")
    A("s_add_u32 s60, s60, s48")
    A("s_lshl_b32 s61, s52, 7")
    A("s_add_u32 s61, s61, s60")
    A("s_lshl_b32 s61, s61, 10")
    A(f"s_mov_b32 s62, {f2u(C_SCALE):#x}")
    for r in range(16): A(f"v_mul_f32 v{32+r}, s62, v{32+r}")
    for i in range(8): A(f"v_cvt_pk_bf16_f32 v{80+i}, v{32+2*i}, v{33+2*i}")
    A(f"s_add_u32 s63, s61, {QF}")
    A(f"buffer_store_dwordx4 v[80:83], v22, s[36:39], s63 offen")
    A(f"s_add_u32 s63, s61, {QF+65536}")
    A(f"buffer_store_dwordx4 v[84:87], v22, s[36:39], s63 offen")
    for i in range(8): A(f"v_cvt_pk_bf16_f32 v{88+i}, v{48+2*i}, v{49+2*i}")
    A(f"s_add_u32 s63, s61, {KF}")
    A(f"buffer_store_dwordx4 v[88:91], v22, s[36:39], s63 offen")
    A(f"s_add_u32 s63, s61, {KF+65536}")
    A(f"buffer_store_dwordx4 v[92:95], v22, s[36:39], s63 offen")
    A("""
    v_and_b32 v13, 31, v1
    v_lshrrev_b32 v14, 4, v13
    v_lshlrev_b32 v14, 16, v14
    v_and_b32 v13, 15, v13
    v_lshrrev_b32 v15, 5, v1
    v_lshl_add_u32 v13, v15, 4, v13
    v_lshl_add_u32 v13, v13, 4, v14
    """)
    for i in range(8): A(f"v_cvt_pk_bf16_f32 v{96+i}, v{64+2*i}, v{65+2*i}")
    A(f"s_add_u32 s63, s61, {VF}")
    A(f"buffer_store_dwordx4 v[96:99], v13, s[36:39], s63 offen")
    A(f"buffer_store_dwordx4 v[100:103], v13, s[36:39], s63 offen offset:512")
    for hd in range(2):
        b=48+8*hd
        A(f"v_mul_f32 v{104+hd}, v{b}, v{b}")
        for r in range(1,8): A(f"v_fmac_f32 v{104+hd}, v{b+r}, v{b+r}")
        A(f"v_mov_b32 v106, v{104+hd}")
        A("s_nop 1")
        A(f"v_permlane32_swap_b32 v{104+hd}, v106")
        A("s_nop 1")
        A(f"v_add_f32 v{104+hd}, v{104+hd}, v106")
        dpp_reduce16(A,"v_max_f32",104+hd)
        A("s_nop 1")
        A(f"v_readlane_b32 s64, v{104+hd}, 0")
        A(f"v_readlane_b32 s65, v{104+hd}, 16")
        A("s_nop 1")
        A(f"v_mov_b32 v107, s64")
        A(f"v_max_f32 v{104+hd}, s65, v107")
    A("s_lshl_b32 s63, s52, 7")
    A("s_add_u32 s63, s63, s60")
    A("s_lshl_b32 s63, s63, 2")
    A(f"s_add_u32 s63, s63, {KN}")
    A("v_mov_b32 v107, 0")
    A("v_cmp_eq_u32 vcc, 0, v1")
    A("s_and_saveexec_b64 s[66:67], vcc")
    A("buffer_store_dword v104, v107, s[36:39], s63 offen")
    A("buffer_store_dword v105, v107, s[36:39], s63 offen offset:256")
    A("s_mov_b64 exec, s[66:67]")
    stamp_end(A,0,48,4,nmid=4)
    A.label(f"{name}_end")
    A("s_endpgm")
    return kernel_header(name)+A.text(), kernel_desc(name,128), 5*STG

RB_LDS = 3*28672
def repack_issue(A):
    A("s_lshl_b32 s70, s2, 2")
    A("s_add_u32 s70, s70, s48")
    A("v_lshrrev_b32 v23, 2, v1")
    A("v_and_b32 v24, 3, v1")
    A("v_lshlrev_b32 v24, 4, v24")
    A("v_mul_u32_u24 v25, 0xac0, v23")
    A("v_add_u32 v25, v25, v24")
    A("v_lshl_add_u32 v26, v23, 10, v24")
    A("s_mul_i32 s71, s48, 7168")
    A(f"s_add_u32 s71, s71, {RB_LDS}")
    slot=0
    for t in range(3):
        A(f"s_add_u32 s77, s70, {1024*t}")
        if t==2:
            A("s_cmp_ge_u32 s77, 2752")
            A("s_cselect_b32 s78, 2752, 0")
            A("s_sub_u32 s77, s77, s78")
        A("s_cmp_ge_u32 s77, 1376")
        A("s_cselect_b32 s40, s14, s12")
        A("s_cselect_b32 s41, s15, s13")
        A("s_cselect_b32 s78, 1376, 0")
        A("s_cselect_b32 s79, 1024, 0")
        A("s_and_b32 s41, s41, 0xffff")
        A(f"s_mov_b32 s42, {512*2752}")
        A("s_mov_b32 s43, 0x00020000")
        A("s_sub_u32 s77, s77, s78")
        A("s_lshr_b32 s78, s77, 5")
        A("s_and_b32 s80, s77, 31")
        A(f"s_mul_i32 s80, s80, {16*2752}")
        A("s_lshl_b32 s78, s78, 6")
        A("s_add_u32 s80, s80, s78")
        A("s_lshl_b32 s77, s77, 11")
        A("s_add_u32 s77, s77, s79")
        A(f"s_add_u32 s{72+slot}, s77, {WGU}")
        A(f"s_add_u32 m0, s71, {slot*1024}")
        A("s_nop 0")
        A("buffer_load_dwordx4 v25, s[40:43], s80 offen lds")
        slot+=1
    for t in range(2):
        A(f"s_add_u32 s77, s70, {1024*t}")
        if t==1:
            A("s_cmp_ge_u32 s77, 1888")
            A("s_cselect_b32 s78, 1888, 0")
            A("s_sub_u32 s77, s77, s78")
        A("s_cmp_ge_u32 s77, 1376")
        A("s_cselect_b32 s40, s8, s16")
        A("s_cselect_b32 s41, s9, s17")
        A(f"s_mov_b32 s42, {1376*1024}")
        A(f"s_cselect_b32 s42, {512*1024}, s42")
        A("s_cselect_b32 s78, 1376, 0")
        A("s_cselect_b32 s79, 0, 32")
        A("s_and_b32 s41, s41, 0xffff")
        A("s_mov_b32 s43, 0x00020000")
        A("s_sub_u32 s77, s77, s78")
        A("s_lshr_b32 s78, s77, 4")
        A("s_and_b32 s77, s77, 15")
        A("s_lshl_b32 s80, s78, 14")
        A("s_lshl_b32 s81, s77, 6")
        A("s_add_u32 s80, s80, s81")
        A(f"s_mul_i32 s77, s77, {NKS}")
        A("s_add_u32 s77, s77, s78")
        A("s_add_u32 s77, s77, s79")
        A("s_lshl_b32 s77, s77, 10")
        A(f"s_add_u32 s{72+slot}, s77, {WF3}")
        A(f"s_add_u32 m0, s71, {slot*1024}")
        A("s_nop 0")
        A("buffer_load_dwordx4 v26, s[40:43], s80 offen lds")
        slot+=1

def repack_finish(A):
    A("v_add_u32 v20, s71, v20")
    A("v_add_u32 v21, s71, v21")
    for slot in range(5):
        nat = slot<3
        a = 20 if nat else 21
        o2 = 256 if nat else 512
        r=80+4*slot
        A(f"ds_read_b64_tr_b16 v[{r}:{r+1}], v{a} offset:{slot*1024}")
        A(f"ds_read_b64_tr_b16 v[{r+2}:{r+3}], v{a} offset:{slot*1024+o2}")
    for slot in range(5):
        r=80+4*slot
        A(f"s_waitcnt lgkmcnt({2*(4-slot)})")
        A(f"buffer_store_dwordx4 {vr(r)}, v22, s[36:39], s{72+slot} offen")

def gate_compute(A):
    for i in range(4):
        A(f"v_lshlrev_b32 v{100+2*i}, 16, v{120+i}")
        A(f"v_and_b32 v{101+2*i}, 0xffff0000, v{120+i}")
    for row in range(2):
        src=112+4*row; acc=108+row
        for i in range(4):
            A(f"v_lshlrev_b32 v110, 16, v{src+i}")
            A(f"v_and_b32 v111, 0xffff0000, v{src+i}")
            if i==0: A(f"v_mul_f32 v{acc}, v110, v{100}")
            else: A(f"v_fmac_f32 v{acc}, v110, v{100+2*i}")
            A(f"v_fmac_f32 v{acc}, v111, v{101+2*i}")
        dpp_reduce16(A,"v_add_f32",acc)
        A("s_nop 1")
        for q in range(4): A(f"v_readlane_b32 s{82+q}, v{acc}, {16*q}")
        A("s_nop 1")
        A(f"v_mov_b32 v{acc}, s82")
        A(f"v_add_f32 v{acc}, s83, v{acc}")
        A(f"v_add_f32 v{acc}, s84, v{acc}")
        A(f"v_add_f32 v{acc}, s85, v{acc}")
        A(f"v_mul_f32 v{acc}, 0xbfb8aa3b, v{acc}")
        A(f"v_exp_f32 v{acc}, v{acc}")
        A("s_nop 0")
        A(f"v_add_f32 v{acc}, 1.0, v{acc}")
        A(f"v_rcp_f32 v{acc}, v{acc}")
        A("s_nop 0")
    A("s_lshl_b32 s82, s54, 2")
    A(f"s_add_u32 s82, s82, {GOFF}")
    A("v_mov_b32 v110, 0")
    A("v_cmp_eq_u32 vcc, 0, v1")
    A("s_and_saveexec_b64 s[66:67], vcc")
    A("buffer_store_dword v108, v110, s[36:39], s82 offen")
    A("buffer_store_dword v109, v110, s[36:39], s82 offen offset:4")
    A("s_mov_b64 exec, s[66:67]")
```

```python
NAME="gated_mix__softmax_full_mha__swiglu_ffn__prompt"
QF=0x000000; KF=0x200000; VF=0x400000
AF=0x600000
WGU=0xE00000
WF3=0x1100000
GOFF=0x1300000
KN=0x1304000
BP=0x1400000
WS_SIZE=0x2000000
NKS=118

class Asm:
    def __init__(self):
        self.l=[]
    def __call__(self,s):
        for x in s.strip("\n").split("\n"):
            x=x.strip()
            if x: self.l.append("  "+x)
    def label(self,s): self.l.append(s+":")
    def raw(self,s): self.l.append(s)
    def text(self): return "\n".join(self.l)+"\n"

def vr(a,n=4): return f"v[{a}:{a+n-1}]"
def sr(a,n=4): return f"s[{a}:{a+n-1}]"

def srd(A, d, lo, nbytes):
    A(f"s_mov_b32 s{d}, s{lo}")
    A(f"s_and_b32 s{d+1}, s{lo+1}, 0xffff")
    A(f"s_mov_b32 s{d+2}, {nbytes}")
    A(f"s_mov_b32 s{d+3}, 0x00020000")

def kernel_header(name):
    return f".globl {name}\n.p2align 8\n.type {name},@function\n{name}:\n"

def kernel_desc(name, vgpr, sgpr=102, accum=None):
    if accum is None: accum=(vgpr+3)//4*4
    return f""".p2align 6
.amdhsa_kernel {name}
  .amdhsa_next_free_vgpr {vgpr}
  .amdhsa_next_free_sgpr {sgpr}
  .amdhsa_accum_offset {accum}
  .amdhsa_group_segment_fixed_size 0
  .amdhsa_kernarg_size 88
  .amdhsa_user_sgpr_count 2
  .amdhsa_user_sgpr_kernarg_segment_ptr 1
  .amdhsa_system_sgpr_workgroup_id_x 1
.end_amdhsa_kernel
"""

def dpp_reduce16(A, op, v, nops="s_nop 1"):
    for c in ("quad_perm:[1,0,3,2]","quad_perm:[2,3,0,1]","row_half_mirror","row_mirror"):
        A(nops)
        A(f"{op}_dpp v{v}, v{v}, v{v} {c} row_mask:0xf bank_mask:0xf")

STAMP=0x1900000
import os
INSTR=os.environ.get("INSTR","0")=="1"
def stamp_begin(A):
    if not INSTR: return
    A("s_memrealtime s[88:89]")
    A("s_memtime s[90:91]")
def stamp_mid(A, idx):
    if not INSTR: return
    A(f"s_memtime s[{92+2*idx}:{93+2*idx}]")
def stamp_end(A, kid, wave_sgpr, nw, srd_base=36, nmid=0):
    if not INSTR: return
    A("s_waitcnt vmcnt(0) lgkmcnt(0)")
    A("s_memrealtime s[84:85]")
    A("s_memtime s[86:87]")
    A("s_waitcnt lgkmcnt(0)")
    A(f"s_mul_i32 s83, s2, {nw}")
    A(f"s_add_u32 s83, s83, s{wave_sgpr}")
    A("s_lshl_b32 s83, s83, 6")
    A(f"s_add_u32 s83, s83, {STAMP+kid*0x40000}")
    vals=[88,90,84,86]+[92+2*i for i in range(nmid)]
    for i,sg in enumerate(vals):
        A(f"v_mov_b32 v2, s{sg}")
        A("v_mov_b32 v3, 0")
        A(f"buffer_store_dword v2, v3, s[{srd_base}:{srd_base+3}], s83 offen offset:{4*i}")

class LgkmTracker:
    def __init__(self, A):
        self.A=A; self.n=0; self.done=0
    def issue(self, txt):
        self.A(txt); self.n+=1; return self.n
    def need(self, seq):
        if seq<=self.done: return
        cnt=self.n-seq
        if cnt>15: cnt=15
        self.A(f"s_waitcnt lgkmcnt({cnt})")
        self.done=self.n-cnt
    def all(self):
        if self.done<self.n:
            self.A("s_waitcnt lgkmcnt(0)"); self.done=self.n

WT=os.environ.get("WT"," sc1")
```

```python
from common import *
import math, struct, os
C_SCALE = 0.25*math.log2(math.e)
def f2u(x): return struct.unpack("<I",struct.pack("<f",x))[0]

STG=53248; NB=3
XO=0; WO=16384; SEG=12288
XF=16
WFR=24
ACC=96
def XR(p): return XF+4*p
def WR(p,t): return WFR+36*p+4*t
def AC(t): return ACC+16*t

def gen_k1(name="k1_qkv_kernel"):
    A=Asm()
    A("s_cmp_ge_u32 s2, 256")
    A(f"s_cbranch_scc1 {name}_end")
    stamp_begin(A)
    A("s_load_dwordx16 s[4:19], s[0:1], 0")
    A("s_load_dwordx2 s[24:25], s[0:1], 80")
    A("v_and_b32 v1, 63, v0")
    A("v_lshrrev_b32 v2, 6, v0")
    A("s_nop 0")
    A("v_readfirstlane_b32 s48, v2")
    A("""
    s_and_b32 s49, s2, 7
    s_lshr_b32 s50, s2, 3
    s_and_b32 s51, s49, 1
    s_lshl_b32 s51, s51, 3
    s_and_b32 s52, s50, 7
    s_add_u32 s51, s51, s52
    s_lshr_b32 s52, s49, 1
    s_lshl_b32 s52, s52, 2
    s_lshr_b32 s53, s50, 3
    s_add_u32 s52, s52, s53
    v_lshlrev_b32 v14, 4, v1
    """)
    A("s_cmp_ge_u32 s48, 4")
    A(f"s_cbranch_scc1 {name}_loader")
    A("""
    v_and_b32 v13, 31, v1
    v_lshrrev_b32 v15, 5, v1
    v_lshrrev_b32 v2, 1, v13
    v_and_b32 v2, 7, v2
    s_lshl_b32 s53, s48, 12
    v_lshlrev_b32 v3, 7, v13
    v_add_u32 v3, s53, v3
    """)
    for s in range(4):
        A(f"""
        v_add_u32 v4, {2*s}, v15
        v_xor_b32 v4, v4, v2
        v_lshl_add_u32 v{8+s}, v4, 4, v3
        """)
    A(f"""
    v_and_b32 v4, 15, v1
    v_lshrrev_b32 v5, 2, v4
    v_lshl_add_u32 v5, v15, 3, v5
    v_mul_u32_u24 v5, 0xc0, v5
    v_lshrrev_b32 v6, 4, v1
    v_and_b32 v6, 1, v6
    v_lshl_add_u32 v5, v6, 5, v5
    v_and_b32 v4, 3, v4
    v_lshl_add_u32 v5, v4, 3, v5
    v_add_u32 v12, {WO}, v5
    """)
    for r in range(144): A(f"v_mov_b32 v{ACC+r}, 0")
    T=LgkmTracker(A)
    def read_list(s,p):
        L=[f"ds_read_b128 {vr(XR(p))}, v{8+s}"]
        for t in range(9):
            sg,tt=divmod(t,3)
            for u in range(2):
                L.append(f"ds_read_b64_tr_b16 v[{WR(p,t)+2*u}:{WR(p,t)+2*u+1}], v12 offset:{sg*SEG+(16*s+4*u)*192+tt*64}")
        return L
    def step(p, seqs, nxt, g0=0, pre=None):
        out=[]
        per=[0]*9
        if nxt:
            n=len(nxt)
            for i in range(n): per[g0+(i*7)//n]+=1
        k=0
        for t in range(9):
            T.need(max(seqs[0], seqs[2+2*t]))
            A(f"v_mfma_f32_32x32x16_bf16 {vr(AC(t),16)}, {vr(WR(p,t))}, {vr(XR(p))}, {vr(AC(t),16)}")
            if pre and t==g0: pre()
            for _ in range(per[t]):
                out.append(T.issue(nxt[k])); k+=1
        return out
    stamp_mid(A,0)
    A("s_waitcnt lgkmcnt(0)")
    A("s_barrier")
    stamp_mid(A,1)
    seqs=[T.issue(x) for x in read_list(0,0)]
    A("s_mov_b32 s60, 0")
    A("s_mov_b32 s61, 0")
    A(f"s_mov_b32 s72, {(-2*STG)&0xffffffff:#x}")
    A(f"s_mov_b32 s73, {STG}")
    def adv():
        A("s_barrier")
        A("s_add_u32 s61, s61, 1")
        A("s_cmp_eq_u32 s61, 3")
        A("s_cselect_b32 s62, s72, s73")
        A("s_cselect_b32 s61, 0, s61")
        for r in (8,9,10,11,12): A(f"v_add_u32 v{r}, s62, v{r}")
    A(".p2align 6")
    A.label(f"{name}_loop")
    T.done=0; T.n=19; seqs=list(range(1,20))
    p=0
    for s in range(3):
        seqs=step(p,seqs,read_list(s+1,1-p)); p=1-p
    T.all()
    seqs2=step(p,seqs,read_list(0,1-p),g0=1,pre=adv); p=1-p
    assert p==0
    A("s_add_u32 s60, s60, 1")
    A("s_cmp_lt_u32 s60, 7")
    A(f"s_cbranch_scc1 {name}_loop")
    T.done=0; T.n=19; seqs=list(range(1,20))
    for s in range(3):
        seqs=step(p,seqs,read_list(s+1,1-p)); p=1-p
    T.all()
    step(p,seqs,None)
    stamp_mid(A,2)
    srd(A,36,24,WS_SIZE)
    A("s_lshl_b32 s60, s51, 2")
    A("s_add_u32 s60, s60, s48")
    A("v_and_b32 v2, 31, v1")
    A("v_lshlrev_b32 v2, 5, v2")
    A("v_lshrrev_b32 v3, 5, v1")
    A("v_lshl_add_u32 v2, v3, 4, v2")
    A("s_nop 7")
    for i in range(3):
        a=AC(i)
        A("s_mul_i32 s61, s52, 3")
        A(f"s_add_u32 s61, s61, {i}")
        A("s_lshr_b32 s62, s61, 4")
        A("s_and_b32 s63, s61, 15")
        A("s_cmp_eq_u32 s62, 0")
        A(f"s_cselect_b32 s64, {f2u(C_SCALE):#x}, 1.0")
        A("s_lshl_b32 s65, s62, 21")
        A("s_lshl_b32 s66, s63, 7")
        A("s_add_u32 s66, s66, s60")
        A("s_lshl_b32 s66, s66, 10")
        A("s_add_u32 s65, s65, s66")
        A("s_cmp_eq_u32 s62, 1")
        A(f"s_cbranch_scc0 {name}_nokn{i}")
        for hd in range(2):
            b=a+8*hd
            A(f"v_mul_f32 v{4+hd}, v{b}, v{b}")
            for r in range(1,8): A(f"v_fmac_f32 v{4+hd}, v{b+r}, v{b+r}")
            A(f"v_mov_b32 v6, v{4+hd}")
            A("s_nop 1")
            A(f"v_permlane32_swap_b32 v{4+hd}, v6")
            A("s_nop 1")
            A(f"v_add_f32 v{4+hd}, v{4+hd}, v6")
            dpp_reduce16(A,"v_max_f32",4+hd)
            A("s_nop 1")
            A(f"v_readlane_b32 s68, v{4+hd}, 0")
            A(f"v_readlane_b32 s69, v{4+hd}, 16")
            A("s_nop 1")
            A(f"v_mov_b32 v7, s68")
            A(f"v_max_f32 v{4+hd}, s69, v7")
        A("s_lshl_b32 s67, s63, 7")
        A("s_add_u32 s67, s67, s60")
        A("s_lshl_b32 s67, s67, 2")
        A(f"s_add_u32 s67, s67, {KN}")
        A("v_mov_b32 v7, 0")
        A("v_cmp_eq_u32 vcc, 0, v1")
        A("s_and_saveexec_b64 s[70:71], vcc")
        A("buffer_store_dword v4, v7, s[36:39], s67 offen")
        A("buffer_store_dword v5, v7, s[36:39], s67 offen offset:256")
        A("s_mov_b64 exec, s[70:71]")
        A.label(f"{name}_nokn{i}")
        for r in range(16): A(f"v_mul_f32 v{a+r}, s64, v{a+r}")
        for q in range(8): A(f"v_cvt_pk_bf16_f32 v{WFR+8*i+q}, v{a+2*q}, v{a+2*q+1}")
        A("s_cmp_eq_u32 s62, 2")
        A("s_cselect_b64 vcc, -1, 0")
        A("v_cndmask_b32 v3, v14, v2, vcc")
        A(f"buffer_store_dwordx4 {vr(WFR+8*i)}, v3, s[36:39], s65 offen{WT}")
        A(f"s_add_u32 s65, s65, 65536")
        A(f"buffer_store_dwordx4 {vr(WFR+8*i+4)}, v3, s[36:39], s65 offen{WT}")
    stamp_mid(A,3)
    A(f"s_mul_i32 s58, s60, {NKS}")
    A("s_mul_i32 s59, s52, 3")
    for u in range(3):
        G=AC(3+u); U=AC(6+u)
        A(f"s_add_u32 s61, s59, {u}")
        A("s_cmp_ge_u32 s61, 43")
        A(f"s_cbranch_scc1 {name}_end2")
        for r0 in range(0,16,4):
            for r in range(r0,r0+4): A(f"v_mul_f32 v{4+r-r0}, 0xbfb8aa3b, v{G+r}")
            for r in range(r0,r0+4): A(f"v_exp_f32 v{4+r-r0}, v{4+r-r0}")
            for r in range(r0,r0+4): A(f"v_mul_f32 v{G+r}, v{G+r}, v{U+r}")
            for r in range(r0,r0+4): A(f"v_add_f32 v{4+r-r0}, 1.0, v{4+r-r0}")
            for r in range(r0,r0+4): A(f"v_rcp_f32 v{4+r-r0}, v{4+r-r0}")
            A("s_nop 0")
            for r in range(r0,r0+4): A(f"v_mul_f32 v{G+r}, v{G+r}, v{4+r-r0}")
        for i in range(8): A(f"v_cvt_pk_bf16_f32 v{U+i}, v{G+2*i}, v{G+2*i+1}")
        A("s_lshl_b32 s62, s61, 1")
        A("s_add_u32 s62, s62, s58")
        A("s_add_u32 s62, s62, 32")
        A("s_lshl_b32 s62, s62, 10")
        A(f"s_add_u32 s62, s62, {AF}")
        A(f"buffer_store_dwordx4 {vr(U)}, v14, s[36:39], s62 offen{WT}")
        A(f"buffer_store_dwordx4 {vr(U+4)}, v14, s[36:39], s62 offen offset:1024{WT}")
    A.label(f"{name}_end2")
    stamp_end(A,0,48,8,nmid=4)
    A("s_endpgm")
    A.label(f"{name}_loader")
    A("s_sub_u32 s49, s48, 4")
    A("""
    v_lshrrev_b32 v5, 3, v1
    v_lshlrev_b32 v5, 10, v5
    v_and_b32 v6, 7, v1
    v_lshrrev_b32 v7, 4, v1
    v_xor_b32 v6, v6, v7
    v_lshl_add_u32 v3, v6, 4, v5
    v_xor_b32 v4, 64, v3
    """)
    A("s_mul_i32 s53, s49, 192")
    for ii in range(3):
        A(f"""
        v_add_u32 v11, s53, v1
        v_add_u32 v11, {64*ii}, v11
        v_mul_u32_u24 v12, 0x1556, v11
        v_lshrrev_b32 v12, 16, v12
        v_mul_u32_u24 v13, 12, v12
        v_sub_u32 v13, v11, v13
        v_lshlrev_b32 v13, 4, v13
        v_mul_u32_u24 v11, 0xc00, v12
        v_add_u32 v{5+ii}, v11, v13
        v_mul_u32_u24 v11, 0xac0, v12
        v_add_u32 v{8+ii}, v11, v13
        """)
    A("""
    s_lshl_b32 s56, s51, 7
    s_lshl_b32 s57, s49, 5
    s_add_u32 s56, s56, s57
    s_lshl_b32 s56, s56, 10
    s_mul_i32 s57, s52, 192
    s_lshl_b32 s58, s49, 12
    s_mul_i32 s59, s49, 3072
    """)
    A("s_waitcnt lgkmcnt(0)")
    srd(A,28,4,2048*1024)
    srd(A,32,6,512*3072)
    srd(A,40,12,512*2752)
    srd(A,44,14,512*2752)
    A("s_cmp_eq_u32 s52, 15")
    A("s_cselect_b32 s42, 0, s42")
    A("s_cselect_b32 s46, 0, s46")
    srd(A,36,24,WS_SIZE)
    def issue_stage(kt):
        base=(kt%NB)*STG
        for i in range(4):
            A(f"s_add_u32 m0, s58, {base+XO+i*1024}")
            A(f"s_add_u32 s60, s56, {i*8192+kt*128}")
            A(f"buffer_load_dwordx4 v{3+(i&1)}, s[28:31], s60 offen lds")
        for sg in range(3):
            sd=(32,40,44)[sg]; rs=(3072,2752,2752)[sg]; vb=(5,8,8)[sg]
            for ii in range(3):
                A(f"s_add_u32 m0, s59, {base+WO+sg*SEG+ii*1024}")
                A(f"s_add_u32 s60, s57, {kt*64*rs}")
                A(f"buffer_load_dwordx4 v{vb+ii}, s[{sd}:{sd+3}], s60 offen lds")
    PV=int(os.environ.get("PV","0"))
    if PV==0:
        issue_stage(0); issue_stage(1)
        stamp_mid(A,0)
        A("s_waitcnt vmcnt(13)")
        A("s_barrier")
        stamp_mid(A,1)
        issue_stage(2)
    else:
        issue_stage(0)
        stamp_mid(A,0)
        A("s_waitcnt vmcnt(0)")
        A("s_barrier")
        stamp_mid(A,1)
        issue_stage(1); issue_stage(2)
    for i in range(1,8):
        if i<=6: A("s_waitcnt vmcnt(13)")
        else: A("s_waitcnt vmcnt(5)")
        A("s_barrier")
        if i+2<=7: issue_stage(i+2)
        if i==6:
            repack_issue(A)
    stamp_mid(A,2)
    A("s_waitcnt vmcnt(0)")
    repack_finish(A)
    gate_compute(A)
    stamp_mid(A,3)
    stamp_end(A,0,48,8,nmid=4)
    A.label(f"{name}_end")
    A("s_endpgm")
    return kernel_header(name)+A.text(), kernel_desc(name,256), NB*STG

RB_LDS = 2*STG
def repack_issue(A):
    A("s_lshl_b32 s70, s2, 2")
    A("s_add_u32 s70, s70, s49")
    A("v_lshrrev_b32 v23, 2, v1")
    A("v_and_b32 v24, 3, v1")
    A("v_lshlrev_b32 v24, 4, v24")
    A("v_lshl_add_u32 v26, v23, 10, v24")
    A("s_lshl_b32 s71, s49, 11")
    A(f"s_add_u32 s71, s71, {RB_LDS}")
    for t in range(2):
        A(f"s_add_u32 s77, s70, {1024*t}")
        if t==1:
            A("s_cmp_ge_u32 s77, 1888")
            A("s_cselect_b32 s78, 1888, 0")
            A("s_sub_u32 s77, s77, s78")
        A("s_cmp_ge_u32 s77, 1376")
        A("s_cselect_b32 s80, s8, s16")
        A("s_cselect_b32 s81, s9, s17")
        A(f"s_mov_b32 s82, {1376*1024}")
        A(f"s_cselect_b32 s82, {512*1024}, s82")
        A("s_cselect_b32 s78, 1376, 0")
        A("s_cselect_b32 s79, 0, 32")
        A("s_and_b32 s81, s81, 0xffff")
        A("s_mov_b32 s83, 0x00020000")
        A("s_sub_u32 s77, s77, s78")
        A("s_lshr_b32 s78, s77, 4")
        A("s_and_b32 s77, s77, 15")
        A("s_lshl_b32 s74, s78, 14")
        A("s_lshl_b32 s75, s77, 6")
        A("s_add_u32 s74, s74, s75")
        A(f"s_mul_i32 s77, s77, {NKS}")
        A("s_add_u32 s77, s77, s78")
        A("s_add_u32 s77, s77, s79")
        A("s_lshl_b32 s77, s77, 10")
        A(f"s_add_u32 s{72+t}, s77, {WF3}")
        A(f"s_add_u32 m0, s71, {t*1024}")
        A("s_nop 0")
        A("buffer_load_dwordx4 v26, s[80:83], s74 offen lds")
    srd(A,80,18,1024)
    A("""
    s_lshl_b32 s54, s51, 7
    s_lshl_b32 s55, s52, 3
    s_add_u32 s54, s54, s55
    s_lshl_b32 s55, s49, 1
    s_add_u32 s54, s54, s55
    s_lshl_b32 s55, s54, 10
    """)
    A("buffer_load_dwordx4 v[112:115], v14, s[28:31], s55 offen")
    A("buffer_load_dwordx4 v[116:119], v14, s[28:31], s55 offen offset:1024")
    A("buffer_load_dwordx4 v[120:123], v14, s[80:83], 0 offen")

def repack_finish(A):
    A("""
    v_and_b32 v17, 15, v1
    v_lshrrev_b32 v18, 2, v17
    v_lshrrev_b32 v19, 4, v1
    v_and_b32 v19, 1, v19
    v_lshlrev_b32 v19, 5, v19
    v_and_b32 v17, 3, v17
    v_lshl_add_u32 v19, v17, 3, v19
    v_lshrrev_b32 v20, 5, v1
    v_lshl_add_u32 v21, v20, 2, v18
    v_lshl_add_u32 v21, v21, 6, v19
    v_add_u32 v21, s71, v21
    """)
    for slot in range(2):
        r=80+4*slot
        A(f"ds_read_b64_tr_b16 v[{r}:{r+1}], v21 offset:{slot*1024}")
        A(f"ds_read_b64_tr_b16 v[{r+2}:{r+3}], v21 offset:{slot*1024+512}")
    for slot in range(2):
        r=80+4*slot
        A(f"s_waitcnt lgkmcnt({2*(1-slot)})")
        A(f"buffer_store_dwordx4 {vr(r)}, v14, s[36:39], s{72+slot} offen{WT}")

def gate_compute(A):
    for i in range(4):
        A(f"v_lshlrev_b32 v{100+2*i}, 16, v{120+i}")
        A(f"v_and_b32 v{101+2*i}, 0xffff0000, v{120+i}")
    for row in range(2):
        src=112+4*row; acc=108+row
        for i in range(4):
            A(f"v_lshlrev_b32 v110, 16, v{src+i}")
            A(f"v_and_b32 v111, 0xffff0000, v{src+i}")
            if i==0: A(f"v_mul_f32 v{acc}, v110, v{100}")
            else: A(f"v_fmac_f32 v{acc}, v110, v{100+2*i}")
            A(f"v_fmac_f32 v{acc}, v111, v{101+2*i}")
        dpp_reduce16(A,"v_add_f32",acc)
        A("s_nop 1")
        for q in range(4): A(f"v_readlane_b32 s{82+q}, v{acc}, {16*q}")
        A("s_nop 1")
        A(f"v_mov_b32 v{acc}, s82")
        A(f"v_add_f32 v{acc}, s83, v{acc}")
        A(f"v_add_f32 v{acc}, s84, v{acc}")
        A(f"v_add_f32 v{acc}, s85, v{acc}")
        A(f"v_mul_f32 v{acc}, 0xbfb8aa3b, v{acc}")
        A(f"v_exp_f32 v{acc}, v{acc}")
        A("s_nop 0")
        A(f"v_add_f32 v{acc}, 1.0, v{acc}")
        A(f"v_rcp_f32 v{acc}, v{acc}")
        A("s_nop 0")
    A("s_lshl_b32 s82, s54, 2")
    A(f"s_add_u32 s82, s82, {GOFF}")
    A("v_mov_b32 v110, 0")
    A("v_cmp_eq_u32 vcc, 0, v1")
    A("s_and_saveexec_b64 s[66:67], vcc")
    A("buffer_store_dword v108, v110, s[36:39], s82 offen")
    A("buffer_store_dword v109, v110, s[36:39], s82 offen offset:4")
    A("s_mov_b64 exec, s[66:67]")
```

```python
from common import *
import math, struct, os
from k1 import repack_issue, repack_finish, gate_compute, f2u, C_SCALE, RB_LDS
STG=53248; NB=3
XO=0; WO=16384; SEG=12288
def gen_k1(name="k1_qkv_kernel"):
    A=Asm()
    A("s_cmp_ge_u32 s2, 256")
    A(f"s_cbranch_scc1 {name}_end")
    stamp_begin(A)
    A("s_load_dwordx16 s[4:19], s[0:1], 0")
    A("s_load_dwordx2 s[24:25], s[0:1], 80")
    A("v_and_b32 v1, 63, v0")
    A("v_lshrrev_b32 v2, 6, v0")
    A("s_nop 0")
    A("v_readfirstlane_b32 s47, v2")
    A("""
    s_and_b32 s49, s2, 7
    s_lshr_b32 s50, s2, 3
    s_and_b32 s51, s49, 1
    s_lshl_b32 s51, s51, 3
    s_and_b32 s52, s50, 7
    s_add_u32 s51, s51, s52
    s_lshr_b32 s52, s49, 1
    s_lshl_b32 s52, s52, 2
    s_lshr_b32 s53, s50, 3
    s_add_u32 s52, s52, s53
    v_lshlrev_b32 v14, 4, v1
    s_and_b32 s48, s47, 3
    """)
    A("s_cmp_ge_u32 s47, 8")
    A(f"s_cbranch_scc1 {name}_loader")
    A("""
    v_and_b32 v13, 31, v1
    v_lshrrev_b32 v15, 5, v1
    v_lshrrev_b32 v2, 1, v13
    v_and_b32 v2, 7, v2
    s_lshl_b32 s53, s48, 12
    v_lshlrev_b32 v3, 7, v13
    v_add_u32 v3, s53, v3
    """)
    for s in range(4):
        A(f"""
        v_add_u32 v4, {2*s}, v15
        v_xor_b32 v4, v4, v2
        v_lshl_add_u32 v{8+s}, v4, 4, v3
        """)
    A(f"""
    v_and_b32 v4, 15, v1
    v_lshrrev_b32 v5, 2, v4
    v_lshl_add_u32 v5, v15, 3, v5
    v_mul_u32_u24 v5, 0xc0, v5
    v_lshrrev_b32 v6, 4, v1
    v_and_b32 v6, 1, v6
    v_lshl_add_u32 v5, v6, 5, v5
    v_and_b32 v4, 3, v4
    v_lshl_add_u32 v5, v4, 3, v5
    v_add_u32 v12, {WO}, v5
    """)
    A("s_mov_b32 s60, 0")
    A("s_mov_b32 s61, 0")
    A(f"s_mov_b32 s72, {(-2*STG)&0xffffffff:#x}")
    A(f"s_mov_b32 s73, {STG}")
    A("s_lshl_b32 s74, s51, 2")
    A("s_add_u32 s74, s74, s48")
    A("s_cmp_ge_u32 s47, 4")
    A(f"s_cbranch_scc1 {name}_typeB")
    def compute(tag, tiles, order):
        nt=len(tiles)
        XF=16; XE=24
        WFR=32
        ACC=WFR+8*nt
        ACC=(ACC+3)//4*4
        XR=lambda p: XF+4*p
        WR=lambda p,i: WFR+4*nt*p+4*i
        AC=lambda i: ACC+16*i
        for r in range(16*nt): A(f"v_mov_b32 v{ACC+r}, 0")
        T=LgkmTracker(A)
        def wread(reg,i,s):
            t=tiles[i]; sg,tt=divmod(t,3)
            return [f"ds_read_b64_tr_b16 v[{reg+2*u}:{reg+2*u+1}], v12 offset:{sg*SEG+(16*s+4*u)*192+tt*64}" for u in range(2)]
        def read_list(s,p):
            L=[f"ds_read_b128 {vr(XR(p))}, v{8+s}"]
            for i in range(nt): L+=wread(WR(p,i),i,s)
            return L
        def step(p, seqs, nxt, g0=0, pre=None):
            out=[]; per=[0]*nt
            ng=nt-1-g0 if nt-1-g0>0 else 1
            if nxt:
                n=len(nxt)
                for i in range(n): per[g0+(i*ng)//n]+=1
            k=0
            for i in range(nt):
                T.need(max(seqs[0], seqs[2+2*i]))
                A(f"v_mfma_f32_32x32x16_bf16 {vr(AC(i),16)}, {vr(WR(p,i))}, {vr(XR(p))}, {vr(AC(i),16)}")
                if pre and i==g0: pre()
                for _ in range(per[i]):
                    out.append(T.issue(nxt[k])); k+=1
            return out
        def adv():
            A("s_barrier")
            A("s_add_u32 s61, s61, 1")
            A("s_cmp_eq_u32 s61, 3")
            A("s_cselect_b32 s62, s72, s73")
            A("s_cselect_b32 s61, 0, s61")
            for r in (8,9,10,11,12): A(f"v_add_u32 v{r}, s62, v{r}")
        nr=1+2*nt
        if tag=="A": stamp_mid(A,0)
        A("s_waitcnt lgkmcnt(0)")
        A("s_barrier")
        if tag=="A": stamp_mid(A,1)
        seqs=[T.issue(x) for x in read_list(0,0)]
        A(".p2align 6")
        A.label(f"{name}_loop{tag}")
        T.done=0; T.n=nr; seqs=list(range(1,nr+1))
        p=0
        for s in range(3):
            seqs=step(p,seqs,read_list(s+1,1-p)); p=1-p
        T.all()
        step(p,seqs,read_list(0,1-p),g0=0,pre=adv); p=1-p
        A("s_add_u32 s60, s60, 1")
        A("s_cmp_lt_u32 s60, 7")
        A(f"s_cbranch_scc1 {name}_loop{tag}")
        T.done=0; T.n=nr; seqs=list(range(1,nr+1))
        xr={1:XR(1), 2:XE, 3:XE+4}
        F=[(i,s) for g in order for i in g for s in (1,2,3)]
        slot={}
        for k in range(len(F)):
            if k<nt: slot[k]=WR(1,k)
            elif k<2*nt: slot[k]=WR(0,k-nt)
            else: slot[k]=slot[k-2*nt]
        nxt=[f"ds_read_b128 {vr(xr[s])}, v{8+s}" for s in (1,2,3)]
        for k in range(nt): nxt+=wread(slot[k],F[k][0],F[k][1])
        sq=step(0,seqs,nxt)
        xs={1:sq[0],2:sq[1],3:sq[2]}
        fs={k:sq[4+2*k] for k in range(nt)}
        stamp_mid(A,2)
        srd(A,36,24,WS_SIZE)
        mf=[]
        def mk(j):
            def f():
                i,s=F[j]
                T.need(max(xs[s],fs[j]))
                A(f"v_mfma_f32_32x32x16_bf16 {vr(AC(i),16)}, {vr(slot[j])}, {vr(xr[s])}, {vr(AC(i),16)}")
                k=nt+j
                if k<len(F):
                    for x in wread(slot[k],F[k][0],F[k][1]): fs[k]=T.issue(x)
            return f
        mf=[mk(j) for j in range(len(F))]
        return dict(nt=nt,AC=AC,mf=mf,F=F,WFR=WFR,T=T,XF=XF)
    def silu_ops(G,U,unit_off,tmp):
        L=[]
        for r0 in range(0,16,4):
            for r in range(r0,r0+4,2): L.append(f"v_pk_mul_f32 v[{tmp+r-r0}:{tmp+r-r0+1}], v[{G+r}:{G+r+1}], s[76:77]")
            for r in range(r0,r0+4): L.append(f"v_exp_f32 v{tmp+r-r0}, v{tmp+r-r0}")
            for r in range(r0,r0+4,2): L.append(f"v_pk_mul_f32 v[{G+r}:{G+r+1}], v[{G+r}:{G+r+1}], v[{U+r}:{U+r+1}]")
            for r in range(r0,r0+4,2): L.append(f"v_pk_add_f32 v[{tmp+r-r0}:{tmp+r-r0+1}], v[{tmp+r-r0}:{tmp+r-r0+1}], s[78:79]")
            for r in range(r0,r0+4): L.append(f"v_rcp_f32 v{tmp+r-r0}, v{tmp+r-r0}")
            L.append("s_nop 0")
            for r in range(r0,r0+4,2): L.append(f"v_pk_mul_f32 v[{G+r}:{G+r+1}], v[{G+r}:{G+r+1}], v[{tmp+r-r0}:{tmp+r-r0+1}]")
            for r in range(r0,r0+4,2): L.append(f"v_cvt_pk_bf16_f32 v{U+r//2}, v{G+r}, v{G+r+1}")
        L.append(f"s_mul_i32 s61, s52, 3")
        L.append(f"s_add_u32 s61, s61, {unit_off}")
        L.append("s_lshl_b32 s62, s61, 1")
        L.append("s_add_u32 s62, s62, s58")
        L.append("s_lshl_b32 s62, s62, 10")
        L.append(f"s_add_u32 s62, s62, {AF}")
        lab=f"{name}_sk{unit_off}"
        L.append("s_cmp_ge_u32 s61, 43\n"+f"s_cbranch_scc1 {lab}\n"+
                 f"buffer_store_dwordx4 {vr(U)}, v14, s[36:39], s62 offen{WT}\n"+
                 f"buffer_store_dwordx4 {vr(U+4)}, v14, s[36:39], s62 offen offset:1024{WT}\n"+f"{lab}:")
        return L
    def merge(mf, ops, lead):
        for f in mf[:lead]: f()
        rest=mf[lead:]
        n=len(rest)
        if n==0:
            for o in ops: A(o)
            return
        gap=max(1,len(ops)//(n+1)) if ops else 0
        gap=min(gap,5)
        k=0
        for j,o in enumerate(ops):
            if k<n and j%gap==0:
                rest[k](); k+=1
            A(o)
        while k<n: rest[k](); k+=1
    def epi_consts():
        A(f"s_mov_b32 s76, 0xbfb8aa3b"); A("s_mov_b32 s77, 0xbfb8aa3b")
        A("s_mov_b32 s78, 1.0"); A("s_mov_b32 s79, 1.0")
        A(f"s_add_u32 s58, s74, 0")
        A(f"s_mul_i32 s58, s74, {NKS}")
        A("s_add_u32 s58, s58, 32")
    R=compute("A",[0,1,2,3,6],[[3,4],[0],[1],[2]])
    AC=R["AC"]; mf=R["mf"]
    epi_consts()
    A("v_and_b32 v2, 31, v1")
    A("v_lshlrev_b32 v2, 5, v2")
    A("v_lshrrev_b32 v3, 5, v1")
    A("v_lshl_add_u32 v2, v3, 4, v2")
    for f in mf[:9]: f()
    A("s_nop 3")
    merge(mf[9:], silu_ops(AC(3),AC(4),0,4), 0)
    A("s_nop 7")
    A("s_nop 3")
    PK=R["XF"]
    for i in range(3):
        a=AC(i); W=R["WFR"]+8*i
        A("s_mul_i32 s61, s52, 3")
        A(f"s_add_u32 s61, s61, {i}")
        A("s_lshr_b32 s62, s61, 4")
        A("s_and_b32 s63, s61, 15")
        A("s_lshl_b32 s65, s62, 21")
        A("s_lshl_b32 s66, s63, 7")
        A("s_add_u32 s66, s66, s74")
        A("s_lshl_b32 s66, s66, 10")
        A("s_add_u32 s65, s65, s66")
        A("s_cmp_eq_u32 s62, 1")
        A(f"s_cbranch_scc0 {name}_nokn{i}")
        for hd in range(2):
            b=a+8*hd
            A(f"v_mul_f32 v{4+hd}, v{b}, v{b}")
            for r in range(1,8): A(f"v_fmac_f32 v{4+hd}, v{b+r}, v{b+r}")
            A(f"v_mov_b32 v6, v{4+hd}")
            A("s_nop 1")
            A(f"v_permlane32_swap_b32 v{4+hd}, v6")
            A("s_nop 1")
            A(f"v_add_f32 v{4+hd}, v{4+hd}, v6")
            dpp_reduce16(A,"v_max_f32",4+hd)
            A("s_nop 1")
            A(f"v_readlane_b32 s68, v{4+hd}, 0")
            A(f"v_readlane_b32 s69, v{4+hd}, 16")
            A("s_nop 1")
            A(f"v_mov_b32 v7, s68")
            A(f"v_max_f32 v{4+hd}, s69, v7")
        A("s_lshl_b32 s67, s63, 7")
        A("s_add_u32 s67, s67, s74")
        A("s_lshl_b32 s67, s67, 2")
        A(f"s_add_u32 s67, s67, {KN}")
        A("v_mov_b32 v7, 0")
        A("v_cmp_eq_u32 vcc, 0, v1")
        A("s_and_saveexec_b64 s[70:71], vcc")
        A("buffer_store_dword v4, v7, s[36:39], s67 offen")
        A("buffer_store_dword v5, v7, s[36:39], s67 offen offset:256")
        A("s_mov_b64 exec, s[70:71]")
        A.label(f"{name}_nokn{i}")
        A("s_cmp_eq_u32 s62, 0")
        A(f"s_cbranch_scc0 {name}_nosc{i}")
        A(f"s_mov_b32 s80, {f2u(C_SCALE):#x}"); A(f"s_mov_b32 s81, {f2u(C_SCALE):#x}")
        for r in range(0,16,2): A(f"v_pk_mul_f32 v[{a+r}:{a+r+1}], v[{a+r}:{a+r+1}], s[80:81]")
        A.label(f"{name}_nosc{i}")
        for q in range(8): A(f"v_cvt_pk_bf16_f32 v{W+q}, v{a+2*q}, v{a+2*q+1}")
        A("s_cmp_eq_u32 s62, 2")
        A("s_cselect_b64 vcc, -1, 0")
        A("v_cndmask_b32 v3, v14, v2, vcc")
        A(f"buffer_store_dwordx4 {vr(W)}, v3, s[36:39], s65 offen{WT}")
        A(f"s_add_u32 s65, s65, 65536")
        A(f"buffer_store_dwordx4 {vr(W+4)}, v3, s[36:39], s65 offen{WT}")
    stamp_mid(A,3)
    stamp_end(A,0,47,12,nmid=4)
    A("s_endpgm")
    A.label(f"{name}_typeB")
    R=compute("B",[4,7,5,8],[[0,1],[2,3]])
    AC=R["AC"]; mf=R["mf"]
    epi_consts()
    for f in mf[:9]: f()
    A("s_nop 3")
    merge(mf[9:], silu_ops(AC(0),AC(1),1,4), 0)
    A("s_nop 7")
    A("s_nop 3")
    for o in silu_ops(AC(2),AC(3),2,4): A(o)
    stamp_mid(A,3)
    stamp_end(A,0,47,12,nmid=4)
    A("s_endpgm")
    A.label(f"{name}_loader")
    A("s_setprio 2")
    A("s_mov_b32 s49, s48")
    A("""
    v_lshrrev_b32 v5, 3, v1
    v_lshlrev_b32 v5, 10, v5
    v_and_b32 v6, 7, v1
    v_lshrrev_b32 v7, 4, v1
    v_xor_b32 v6, v6, v7
    v_lshl_add_u32 v3, v6, 4, v5
    v_xor_b32 v4, 64, v3
    """)
    A("s_mul_i32 s53, s49, 192")
    for ii in range(3):
        A(f"""
        v_add_u32 v11, s53, v1
        v_add_u32 v11, {64*ii}, v11
        v_mul_u32_u24 v12, 0x1556, v11
        v_lshrrev_b32 v12, 16, v12
        v_mul_u32_u24 v13, 12, v12
        v_sub_u32 v13, v11, v13
        v_lshlrev_b32 v13, 4, v13
        v_mul_u32_u24 v11, 0xc00, v12
        v_add_u32 v{5+ii}, v11, v13
        v_mul_u32_u24 v11, 0xac0, v12
        v_add_u32 v{8+ii}, v11, v13
        """)
    A("""
    s_lshl_b32 s56, s51, 7
    s_lshl_b32 s57, s49, 5
    s_add_u32 s56, s56, s57
    s_lshl_b32 s56, s56, 10
    s_mul_i32 s57, s52, 192
    s_lshl_b32 s58, s49, 12
    s_mul_i32 s59, s49, 3072
    """)
    A("s_waitcnt lgkmcnt(0)")
    srd(A,28,4,2048*1024)
    srd(A,32,6,512*3072)
    srd(A,40,12,512*2752)
    srd(A,44,14,512*2752)
    A("s_cmp_eq_u32 s52, 15")
    A("s_cselect_b32 s42, 0, s42")
    A("s_cselect_b32 s46, 0, s46")
    srd(A,36,24,WS_SIZE)
    def issue_stage(kt):
        base=(kt%NB)*STG
        for i in range(4):
            A(f"s_add_u32 m0, s58, {base+XO+i*1024}")
            A(f"s_add_u32 s60, s56, {i*8192+kt*128}")
            A(f"buffer_load_dwordx4 v{3+(i&1)}, s[28:31], s60 offen lds")
        for sg in range(3):
            sd=(32,40,44)[sg]; rs=(3072,2752,2752)[sg]; vb=(5,8,8)[sg]
            for ii in range(3):
                A(f"s_add_u32 m0, s59, {base+WO+sg*SEG+ii*1024}")
                A(f"s_add_u32 s60, s57, {kt*64*rs}")
                A(f"buffer_load_dwordx4 v{vb+ii}, s[{sd}:{sd+3}], s60 offen lds")
    issue_stage(0); issue_stage(1)
    stamp_mid(A,0)
    A("s_waitcnt vmcnt(13)")
    A("s_barrier")
    stamp_mid(A,1)
    issue_stage(2)
    for i in range(1,8):
        if i<=6: A("s_waitcnt vmcnt(13)")
        else: A("s_waitcnt vmcnt(5)")
        A("s_barrier")
        if i+2<=7: issue_stage(i+2)
        if i==6: repack_issue(A)
    stamp_mid(A,2)
    A("s_waitcnt vmcnt(0)")
    repack_finish(A)
    gate_compute(A)
    stamp_mid(A,3)
    A("s_add_u32 s48, s49, 8")
    stamp_end(A,0,48,12,nmid=4)
    A.label(f"{name}_end")
    A("s_endpgm")
    return kernel_header(name)+A.text(), kernel_desc(name,168), NB*STG
DUMMY=0x1F00000
```

```python
from common import *
import os
PSW=int(os.environ.get("PSW","6"))
GD=int(os.environ.get("GD","16"))
CB=131072; FLG=CB+16384; UN=8
EARLY1=int(os.environ.get('E1','6')); EARLY2=int(os.environ.get('E2','12'))
LV=[9,25,63]
def gen_k2(name="k2_attn_kernel"):
    A=Asm()
    A("s_cmp_ge_u32 s2, 256")
    A(f"s_cbranch_scc1 {name}_end")
    stamp_begin(A)
    A("s_load_dwordx2 s[6:7], s[0:1], 80")
    A("""
    v_and_b32 v1, 63, v0
    v_lshrrev_b32 v2, 6, v0
    s_nop 0
    v_readfirstlane_b32 s48, v2
    s_and_b32 s49, s2, 7
    s_lshr_b32 s50, s2, 3
    s_and_b32 s51, s50, 3
    s_lshl_b32 s51, s51, 3
    s_add_u32 s51, s51, s49
    s_lshr_b32 s52, s50, 2
    v_lshlrev_b32 v4, 4, v1
    """)
    A("s_cmp_ge_u32 s48, 8")
    A(f"s_cbranch_scc1 {name}_gemm")
    A("s_lshl_b32 s53, s52, 3")
    A("s_add_u32 s53, s53, s48")
    S=[32,48]; Cm=64; O=80; P=96; KFR=[104,108]; VFR=[[112,116],[120,124]]
    A("v_lshlrev_b32 v5, 2, v1")
    A("v_and_b32 v12, 31, v1")
    A("v_lshlrev_b32 v12, 2, v12")
    A("s_lshl_b32 s54, s51, 6")
    A("s_add_u32 s54, s54, s53")
    A("s_lshl_b32 s54, s54, 10")
    A(f"s_add_u32 s54, s54, {QF}")
    A("s_lshl_b32 s55, s51, 8")
    A(f"s_add_u32 s55, s55, {KN}")
    A("s_lshl_b32 s56, s53, 7")
    A(f"s_add_u32 s56, s56, {GOFF}")
    A("s_waitcnt lgkmcnt(0)")
    srd(A,36,6,WS_SIZE)
    A("buffer_load_dwordx4 v[8:11], v4, s[36:39], s54 offen")
    A("buffer_load_dword v6, v5, s[36:39], s55 offen")
    A("buffer_load_dword v7, v12, s[36:39], s56 offen")
    A("v_and_b32 v12, 1, v0")
    A("v_cmp_eq_u32 vcc, 0, v12")
    A("v_mov_b32 v13, 0x3f80")
    A("v_mov_b32 v25, 0")
    A("v_mov_b32 v27, 0")
    A("v_cndmask_b32 v24, 0, v13, vcc")
    A("v_mov_b32 v28, 0"); A("v_mov_b32 v29, 0"); A("v_mov_b32 v30, 0"); A("v_mov_b32 v31, 0")
    A("v_mov_b32 v26, v24")
    A("v_lshlrev_b32 v12, 4, v0")
    A(f"v_add_u32 v12, {CB}, v12")
    A(f"v_mov_b32 v13, {FLG}")
    A("ds_write_b128 v12, v[24:27]")
    A("ds_write_b128 v12, v[24:27] offset:8192")
    A("ds_write_b128 v13, v[28:31]")
    A("s_waitcnt lgkmcnt(0)")
    A("s_barrier")
    A(f"""
    v_lshrrev_b32 v14, 5, v1
    v_and_b32 v15, 15, v1
    v_lshrrev_b32 v16, 2, v15
    v_lshl_add_u32 v16, v14, 2, v16
    v_lshlrev_b32 v16, 5, v16
    v_and_b32 v17, 1, v15
    v_lshl_add_u32 v16, v17, 4, v16
    v_lshrrev_b32 v17, 1, v15
    v_and_b32 v17, 1, v17
    v_lshl_add_u32 v16, v17, 3, v16
    v_add_u32 v16, 0x10000, v16
    v_xor_b32 v17, 1, v14
    v_lshlrev_b32 v17, 7, v17
    v_and_b32 v18, 3, v15
    v_lshl_add_u32 v17, v18, 3, v17
    v_add_u32 v17, {CB}, v17
    v_and_b32 v18, 16, v1
    v_cmp_eq_u32 vcc, 0, v18
    v_mov_b32 v18, {UN*1024}
    v_mov_b32 v22, {FLG}
    s_nop 0
    v_cndmask_b32 v15, v17, v16, vcc
    v_cndmask_b32 v21, 0, v18, vcc
    """)
    A("s_waitcnt vmcnt(0)")
    for i in range(4):
        A(f"v_lshlrev_b32 v16, 16, v{8+i}")
        A(f"v_and_b32 v17, 0xffff0000, v{8+i}")
        if i==0: A("v_mul_f32 v18, v16, v16")
        else: A("v_fmac_f32 v18, v16, v16")
        A("v_fmac_f32 v18, v17, v17")
    A("v_mov_b32 v19, v18")
    A("s_nop 1")
    A("v_permlane32_swap_b32 v18, v19")
    A("s_nop 1")
    A("v_add_f32 v18, v18, v19")
    dpp_reduce16(A,"v_max_f32",6)
    A("s_nop 1")
    for q in range(4): A(f"v_readlane_b32 s{62+q}, v6, {16*q}")
    A("s_nop 1")
    A("v_mov_b32 v6, s62")
    A("v_max_f32 v6, s63, v6")
    A("v_max_f32 v6, s64, v6")
    A("v_max_f32 v6, s65, v6")
    A("v_mul_f32 v18, v18, v6")
    A("v_sqrt_f32 v18, v18")
    A("s_nop 0")
    A("v_mul_f32 v18, 0x3f828f5c, v18")
    stamp_mid(A,0)
    nsp=[0]
    def spin(need):
        k=nsp[0]; nsp[0]+=1
        A(f"s_cmp_ge_u32 s68, {need}")
        A(f"s_cbranch_scc1 {name}_ok{k}")
        A.label(f"{name}_sp{k}")
        A("ds_read_b128 v[24:27], v22")
        A("s_waitcnt lgkmcnt(0)")
        A("v_min_u32 v24, v24, v25")
        A("v_min_u32 v26, v26, v27")
        A("v_min_u32 v24, v24, v26")
        A("s_nop 0")
        A("v_readfirstlane_b32 s68, v24")
        A("s_nop 3")
        A(f"s_cmp_ge_u32 s68, {need}")
        A(f"s_cbranch_scc0 {name}_sp{k}")
        A.label(f"{name}_ok{k}")
    A("s_mov_b32 s68, 0")
    A("v_cmp_lt_f32 vcc, 0x42200000, v18")
    A("v_lshlrev_b32 v14, 4, v1")
    A("s_nop 1")
    A(f"s_cbranch_vccz {name}_fast")
    spin(3)
    A("v_mov_b32 v18, 0xff7fffff")
    A("s_mov_b32 s66, 0")
    A("v_mov_b32 v20, v14")
    A.label(f"{name}_mx")
    A(f"ds_read_b128 {vr(KFR[0])}, v20")
    A("s_waitcnt lgkmcnt(0)")
    A(f"v_mfma_f32_32x32x16_bf16 {vr(S[0],16)}, {vr(KFR[0])}, v[8:11], 0")
    A("s_nop 15")
    A("s_nop 3")
    for r in range(0,16,2): A(f"v_max3_f32 v18, v18, v{S[0]+r}, v{S[0]+r+1}")
    A("v_add_u32 v20, 1024, v20")
    A("s_add_u32 s66, s66, 1")
    A("s_cmp_lt_u32 s66, 64")
    A(f"s_cbranch_scc1 {name}_mx")
    A("v_mov_b32 v19, v18")
    A("s_nop 1")
    A("v_permlane32_swap_b32 v18, v19")
    A("s_nop 1")
    A("v_max_f32 v18, v18, v19")
    A.label(f"{name}_fast")
    for r in range(16): A(f"v_sub_f32 v{Cm+r}, 0, v18")
    for r in range(16): A(f"v_mov_b32 v{O+r}, 0")
    for r in range(4): A(f"v_mov_b32 v{P+4+r}, 0")
    for r in range(4): A(f"v_mov_b32 v{VFR[1][1]+r}, 0")
    for r in range(2): A(f"v_mov_b32 v{S[1]+14+r}, 0")
    spin(1)
    stamp_mid(A,1)
    def kread(t,buf): A(f"ds_read_b128 {vr(KFR[buf])}, v14 offset:{(t)*1024}")
    def vread(t,buf):
        for sset in range(2):
            for u in range(2):
                r=VFR[buf][sset]+2*u
                A(f"ds_read_b64_tr_b16 v[{r}:{r+1}], v15 offset:{t*1024+sset*512+u*256}")
    kread(0,0)
    A("s_waitcnt lgkmcnt(0)")
    A(f"v_mfma_f32_32x32x16_bf16 {vr(S[0],16)}, {vr(KFR[0])}, v[8:11], {vr(Cm,16)}")
    kread(1,1); vread(0,0)
    A("s_mov_b32 s66, 0")
    A("s_mov_b32 s69, 1")
    A("s_cmp_ge_u32 s48, 4")
    A(f"s_cbranch_scc0 {name}_noprio")
    A("s_setprio 1")
    A.label(f"{name}_noprio")
    A("s_nop 7")
    A("s_nop 7")
    A(".p2align 6")
    A.label(f"{name}_loop")
    for t in range(UN):
        cur=t&1; nxt=1-cur
        E=lambda i: A(f"v_exp_f32 v{S[cur]+i}, v{S[cur]+i}")
        C=lambda i: A(f"v_cvt_pk_bf16_f32 v{P+i}, v{S[cur]+2*i}, v{S[cur]+2*i+1}")
        E(0);E(1)
        A(f"v_cvt_pk_bf16_f32 v{P+7}, v{S[nxt]+14}, v{S[nxt]+15}")
        kread(t+2,cur)
        E(2)
        A(f"v_mfma_f32_32x32x16_bf16 {vr(O,16)}, {vr(VFR[nxt][1])}, {vr(P+4)}, {vr(O,16)}")
        vread(t+1,nxt)
        E(3);C(0);E(4);E(5);C(1);E(6)
        A("s_waitcnt lgkmcnt(5)")
        A(f"v_mfma_f32_32x32x16_bf16 {vr(S[nxt],16)}, {vr(KFR[nxt])}, v[8:11], {vr(Cm,16)}")
        E(7);C(2);E(8);E(9);C(3);E(10);E(11)
        A(f"v_mfma_f32_32x32x16_bf16 {vr(O,16)}, {vr(VFR[cur][0])}, {vr(P)}, {vr(O,16)}")
        C(4);E(12);E(13);C(5);E(14);E(15);C(6)
    A(f"v_add_u32 v14, {UN*1024}, v14")
    A("v_add_u32 v15, v21, v15")
    A("s_add_u32 s66, s66, 1")
    A(f"s_cmp_eq_u32 s66, {PSW}")
    A(f"s_cbranch_scc0 {name}_nosw")
    A("s_setprio 0")
    A.label(f"{name}_nosw")
    A("s_cmp_ge_u32 s66, 3")
    A("s_cselect_b32 s69, 3, 2")
    spin("s69")
    A(f"s_cmp_lt_u32 s66, {64//UN}")
    A(f"s_cbranch_scc1 {name}_loop")
    stamp_mid(A,2)
    A(f"v_cvt_pk_bf16_f32 v{P+7}, v{S[1]+14}, v{S[1]+15}")
    A("s_nop 1")
    A(f"v_mfma_f32_32x32x16_bf16 {vr(O,16)}, {vr(VFR[1][1])}, {vr(P+4)}, {vr(O,16)}")
    A("s_waitcnt lgkmcnt(0)")
    A("s_nop 15")
    A("s_nop 7")
    A(f"v_rcp_f32 v16, v{O+8}")
    A("s_nop 0")
    A("v_mul_f32 v16, v16, v7")
    for r in range(8): A(f"v_mul_f32 v{O+r}, v{O+r}, v16")
    for i in range(4): A(f"v_cvt_pk_bf16_f32 v{P+i}, v{O+2*i}, v{O+2*i+1}")
    A(f"s_mul_i32 s54, s53, {NKS}")
    A("s_add_u32 s54, s54, s51")
    A("s_lshl_b32 s54, s54, 10")
    A(f"s_add_u32 s54, s54, {AF}")
    A(f"buffer_store_dwordx4 {vr(P)}, v4, s[36:39], s54 offen{WT}")
    stamp_end(A,2,48,12,nmid=4)
    A("s_endpgm")
    A.label(f"{name}_gemm")
    A("s_setprio 3")
    A("s_sub_u32 s49, s48, 8")
    A("s_waitcnt lgkmcnt(0)")
    srd(A,36,6,WS_SIZE)
    A("s_lshl_b32 s55, s51, 16")
    A("s_lshl_b32 s56, s49, 10")
    A("s_add_u32 s55, s55, s56")
    A("s_lshl_b32 s62, s49, 2")
    A(f"s_add_u32 s62, s62, {FLG}")
    A("v_mov_b32 v5, s62")
    A("v_mov_b32 v8, 1"); A("v_mov_b32 v9, 2"); A("v_mov_b32 v10, 3")
    for i in range(16):
        A(f"s_add_u32 m0, s56, {i*4096}")
        A(f"s_add_u32 s57, s55, {KF+i*4096}")
        A("buffer_load_dwordx4 v4, s[36:39], s57 offen lds")
        A(f"s_add_u32 m0, s56, {65536+i*4096}")
        A(f"s_add_u32 s57, s55, {VF+i*4096}")
        A("buffer_load_dwordx4 v4, s[36:39], s57 offen lds")
        if i==2: A("s_barrier")
        if i==EARLY1:
            A(f"s_waitcnt vmcnt({2*(i+1)-6})")
            A("ds_write_b32 v5, v8")
        if i==EARLY2:
            A(f"s_waitcnt vmcnt({2*(i+1)-14})")
            A("ds_write_b32 v5, v9")
    A("""
    s_and_b32 s58, s2, 7
    s_lshl_b32 s58, s58, 3
    s_lshr_b32 s59, s50, 3
    s_lshl_b32 s59, s59, 1
    s_add_u32 s58, s58, s59
    s_lshr_b32 s59, s49, 1
    s_add_u32 s58, s58, s59
    s_and_b32 s59, s50, 7
    s_lshl_b32 s59, s59, 1
    s_and_b32 s60, s49, 1
    s_add_u32 s59, s59, s60
    """)
    A(f"s_mul_i32 s60, s58, {NKS}")
    A("s_add_u32 s60, s60, 32")
    A("s_lshl_b32 s60, s60, 10")
    A(f"s_add_u32 s60, s60, {AF}")
    A(f"s_mul_i32 s61, s59, {NKS}")
    A("s_add_u32 s61, s61, 32")
    A("s_lshl_b32 s61, s61, 10")
    A(f"s_add_u32 s61, s61, {WF3}")
    stamp_mid(A,0)
    A("s_waitcnt vmcnt(0)")
    A("ds_write_b32 v5, v10")
    stamp_mid(A,1)
    ACC=16; RB=32
    for r in range(16): A(f"v_mov_b32 v{ACC+r}, 0")
    A("v_and_b32 v5, 31, v1")
    A("v_lshlrev_b32 v5, 2, v5")
    A("s_lshl_b32 s54, s58, 7")
    A(f"s_add_u32 s54, s54, {GOFF}")
    A("buffer_load_dword v7, v5, s[36:39], s54 offen")
    def gl(s):
        b=RB+8*(s%GD)
        A(f"buffer_load_dwordx4 {vr(b)}, v4, s[36:39], s61 offen")
        A(f"buffer_load_dwordx4 {vr(b+4)}, v4, s[36:39], s60 offen")
        A("s_add_u32 s61, s61, 1024")
        A("s_add_u32 s60, s60, 1024")
    NS=86
    for s in range(GD): gl(s)
    for s in range(NS):
        b=RB+8*(s%GD)
        rem=min(GD-1,NS-1-s)
        A(f"s_waitcnt vmcnt({2*rem})")
        A(f"v_mfma_f32_32x32x16_bf16 {vr(ACC,16)}, {vr(b)}, {vr(b+4)}, {vr(ACC,16)}")
        if s+GD<NS: gl(s+GD)
    stamp_mid(A,2)
    A("v_sub_f32 v7, 1.0, v7")
    A("s_nop 15")
    A("s_nop 3")
    for r in range(16): A(f"v_mul_f32 v{ACC+r}, v{ACC+r}, v7")
    A("s_lshl_b32 s60, s58, 4")
    A("s_add_u32 s60, s60, s59")
    A("s_lshl_b32 s60, s60, 12")
    A(f"s_add_u32 s60, s60, {BP}")
    for q in range(4):
        A(f"buffer_store_dwordx4 {vr(ACC+4*q)}, v4, s[36:39], s60 offen offset:{1024*q}{WT}")
    stamp_end(A,2,48,12,nmid=4)
    A.label(f"{name}_end")
    A("s_endpgm")
    return kernel_header(name)+A.text(), kernel_desc(name,168), FLG+1024
```

```python
from common import *
def gen_k3(name=NAME+"_kernel"):
    A=Asm()
    A("s_cmp_ge_u32 s2, 256")
    A(f"s_cbranch_scc1 {name}_end")
    stamp_begin(A)
    A("s_load_dwordx2 s[4:5], s[0:1], 64")
    A("s_load_dwordx2 s[6:7], s[0:1], 80")
    A("""
    v_and_b32 v1, 63, v0
    v_lshrrev_b32 v2, 6, v0
    s_nop 0
    v_readfirstlane_b32 s48, v2
    s_and_b32 s49, s2, 7
    s_lshr_b32 s50, s2, 3
    s_and_b32 s51, s50, 3
    s_lshl_b32 s52, s49, 2
    s_add_u32 s51, s51, s52
    s_lshr_b32 s52, s50, 2
    v_lshlrev_b32 v4, 4, v1
    s_and_b32 s61, s48, 1
    s_lshr_b32 s62, s48, 1
    s_lshl_b32 s63, s51, 1
    s_add_u32 s63, s63, s61
    s_lshl_b32 s64, s52, 1
    s_add_u32 s64, s64, s62
    s_lshl_b32 s53, s48, 3
    """)
    for dst,src,base,x in ((55,63,AF,0),(56,63,AF,1),(57,64,WF3,0),(58,64,WF3,1)):
        A(f"s_xor_b32 s{dst}, s{src}, {x}")
        A(f"s_mul_i32 s{dst}, s{dst}, {NKS}")
        A(f"s_add_u32 s{dst}, s{dst}, s53")
        A(f"s_lshl_b32 s{dst}, s{dst}, 10")
        A(f"s_add_u32 s{dst}, s{dst}, {base}")
    A("s_lshl_b32 s59, s63, 4")
    A("s_add_u32 s59, s59, s64")
    A("s_lshl_b32 s59, s59, 12")
    A(f"s_add_u32 s59, s59, {BP}")
    A("s_waitcnt lgkmcnt(0)")
    srd(A,28,4,2048*1024)
    srd(A,36,6,WS_SIZE)
    ACC=16; FR=80
    def fr(s,i): return FR+16*s+4*i
    for q in range(4):
        A(f"buffer_load_dwordx4 {vr(ACC+4*q)}, v4, s[36:39], s59 offen offset:{q*1024}")
    for s in range(8):
        o=(s&3)*1024
        for i,sg in ((0,55),(2,57),(1,56),(3,58)):
            A(f"buffer_load_dwordx4 {vr(fr(s,i))}, v4, s[36:39], s{sg} offen offset:{o}")
        if s==3:
            for sg in (55,56,57,58): A(f"s_add_u32 s{sg}, s{sg}, 4096")
    stamp_mid(A,0)
    for j in (1,2,3):
        A(f"s_xor_b32 s66, s48, {j}")
        A("s_mul_i32 s66, s66, 12288")
        A(f"s_add_u32 s66, s66, {(j-1)*4096}")
        A(f"v_add_u32 v{5+j}, s66, v4")
    A("s_mul_i32 s66, s48, 12288")
    A("v_add_u32 v9, s66, v4")
    A("""
    v_and_b32 v11, 31, v1
    v_lshrrev_b32 v12, 5, v1
    s_lshl_b32 s59, s63, 15
    s_lshl_b32 s60, s64, 6
    s_add_u32 s59, s59, s60
    v_lshlrev_b32 v10, 10, v11
    v_lshl_add_u32 v10, v12, 4, v10
    """)
    for s in range(8):
        A(f"s_waitcnt vmcnt({4*(7-s)})")
        for j,(b,a) in enumerate(((2,0),(2,1),(3,0),(3,1))):
            ac=ACC+16*j
            c="0" if (s==0 and j>0) else vr(ac,16)
            A(f"v_mfma_f32_32x32x16_bf16 {vr(ac,16)}, {vr(fr(s,b))}, {vr(fr(s,a))}, {c}")
    stamp_mid(A,1)
    A("s_nop 7")
    A("s_nop 1")
    for j in (1,2,3):
        if j==3: A("s_nop 7")
        for q in range(4):
            A(f"ds_write_b128 v{5+j}, {vr(ACC+16*j+4*q)} offset:{q*1024}")
    A("s_waitcnt lgkmcnt(0)")
    A("s_barrier")
    for k in range(3):
        for q in range(4):
            A(f"ds_read_b128 {vr(80+16*k+4*q)}, v9 offset:{k*4096+q*1024}")
    for k in range(3):
        A(f"s_waitcnt lgkmcnt({4*(2-k)})")
        for r in range(0,16,2):
            A(f"v_pk_add_f32 v[{ACC+r}:{ACC+r+1}], v[{ACC+r}:{ACC+r+1}], v[{80+16*k+r}:{80+16*k+r+1}]")
    for i in range(8): A(f"v_cvt_pk_bf16_f32 v{80+i}, v{ACC+2*i}, v{ACC+2*i+1}")
    A("s_nop 1")
    for i in range(2):
        b=80+4*i
        A(f"v_permlane32_swap_b32 v{b}, v{b+2}")
        A(f"v_permlane32_swap_b32 v{b+1}, v{b+3}")
    A("s_nop 1")
    A("buffer_store_dwordx4 v[80:83], v10, s[28:31], s59 offen")
    A("buffer_store_dwordx4 v[84:87], v10, s[28:31], s59 offen offset:32")
    stamp_end(A,3,48,4,nmid=4)
    A.label(f"{name}_end")
    A("s_endpgm")
    return kernel_header(name)+A.text(), kernel_desc(name,208), 49152
```

```python
import sys
from common import *
import os
if os.environ.get("K1","b")=="b":
    from k1b import gen_k1
    K1T=768
else:
    from k1 import gen_k1
    K1T=512
from k2 import gen_k2
from k3c import gen_k3
def build(out):
    ks=[(gen_k1(),"k1_qkv_kernel",K1T),(gen_k2(),"k2_attn_kernel",768),(gen_k3(),NAME+"_kernel",256)]
    hdr=open("cdna_kernels/"+NAME+".s.ref").read().split("; Override")[0]
    t=hdr
    for (code,desc,lds),n,blk in ks:
        t+=f"; @launch kernel={n} grid=(256,1,1) block=({blk},1,1) lds={lds}\n"
    t+='.amdgcn_target "amdgcn-amd-amdhsa--gfx950"\n.text\n'
    for (code,desc,lds),n,blk in ks: t+=code
    t+='.section .rodata,"a"\n'
    for (code,desc,lds),n,blk in ks: t+=desc
    open(out,"w").write(t)
if __name__=="__main__":
    build(sys.argv[1] if len(sys.argv)>1 else "v3.s")
```
